```python
import torch

def _softmax(x, axis=-1):
    return torch.softmax(x, dim=axis)
def _gelu(x):
    return torch.nn.functional.gelu(x, approximate="tanh")
def _silu(x):
    return torch.nn.functional.silu(x)
def _sigmoid(x):
    return torch.sigmoid(x)
def _layernorm(x, axis=-1, eps=1e-5):
    m = x.mean(dim=axis, keepdim=True)
    v = x.var(dim=axis, keepdim=True, unbiased=False)
    return (x - m) / torch.sqrt(v + eps)
def _scatter_add(tgt, idx, src, axis=0):
    return tgt.clone().index_add_(axis, idx, src)
def _segment_sum(src, seg, n):
    out = torch.zeros((n,) + src.shape[1:], dtype=src.dtype)
    return out.index_add_(0, seg, src)
def _pad(x, pw):
    flat = tuple(v for pair in reversed(pw) for v in pair)
    return torch.nn.functional.pad(x, flat)

kernel_name = 'parallel_sum__ssm_conv_h3__glu_gated_reglu__prompt'

def setup_inputs():

    _w = (lambda a: (lambda t: t.to(torch.bfloat16) if t.is_floating_point() else t)(torch.as_tensor(a)))
    def _A_setup():
        B, S, D = 1, 2048, 448
        ks = 4
        return {
            "q": _w((lambda *s: torch.randn(*s, dtype=torch.bfloat16) * 0.05)(B, S, D)),
            "k": _w((lambda *s: torch.randn(*s, dtype=torch.bfloat16) * 0.2)(B, S, D)),
            "v": _w((lambda *s: torch.randn(*s, dtype=torch.bfloat16) * 0.2)(B, S, D)),
            "shift_k": _w((lambda *s: torch.randn(*s, dtype=torch.bfloat16) * 0.2)(D, ks) * 0.5),
            "ssm_k": _w((lambda *s: torch.randn(*s, dtype=torch.bfloat16) * 0.4)(D, S) * (1.0 / S ** 0.5)),
            "ssm_D": _w((lambda *s: torch.randn(*s, dtype=torch.bfloat16) * 0.2)(D)),
        }
    _A_in = _A_setup()

    def _B_setup():
        B, S, D, F = 1, 2048, 448, 1792
        return {
            "x": _w((lambda *s: torch.randn(*s, dtype=torch.bfloat16) * 0.05)(B, S, D)),
            "W_gate": _w((lambda *s: torch.randn(*s, dtype=torch.bfloat16) * 0.2)(D, F) * (2.0 / D) ** 0.5),
            "W_up": _w((lambda *s: torch.randn(*s, dtype=torch.bfloat16) * 0.2)(D, F) * (2.0 / D) ** 0.5),
            "W_down": _w((lambda *s: torch.randn(*s, dtype=torch.bfloat16) * 0.2)(F, D) * (1.0 / F) ** 0.5),
        }
    _B_in = _B_setup()

    return {
        "A_q": _A_in["q"],
        "A_k": _A_in["k"],
        "A_v": _A_in["v"],
        "A_shift_k": _A_in["shift_k"],
        "A_ssm_k": _A_in["ssm_k"],
        "A_ssm_D": _A_in["ssm_D"],
        "B_x": _B_in["x"],
        "B_W_gate": _B_in["W_gate"],
        "B_W_up": _B_in["W_up"],
        "B_W_down": _B_in["W_down"],
    }

def reference(A_q, A_k, A_v, A_shift_k, A_ssm_k, A_ssm_D, B_x, B_W_gate, B_W_up, B_W_down):
    def _A_ref(q, k, v, shift_k, ssm_k, ssm_D):
        B, S, D = q.shape
        ks = shift_k.shape[-1]
        k_pad = _pad(k, ((0, 0), (ks - 1, 0), (0, 0)))
        k_shift = torch.zeros_like(k)
        for t in range(ks):
            k_shift = k_shift + k_pad[:, t:t + S, :] * shift_k[:, ks - 1 - t][None, None, :]
        kv = k_shift * v
        L = 2 * S
        kv_pad = _pad(kv, ((0, 0), (0, S), (0, 0)))
        kf_pad = _pad(ssm_k, ((0, 0), (0, S)))
        kv_f = (lambda x, axes=(-2,-1): torch.fft.rfft2(x.float(), dim=axes))(kv_pad[:, None, :, :], axes=(1, 2))
        kf_f = (lambda x, axes=(-2,-1): torch.fft.rfft2(x.float(), dim=axes))(kf_pad[:, None, :], axes=(1, 2))
        kf_f = (lambda x, *d: x.permute(*d))(kf_f, 1, 2, 0)
        y_f = kv_f * kf_f[None, :, :, :]
        y = (lambda x, s, axes=(-2,-1): torch.fft.irfft2(x, s=s, dim=axes).to(torch.bfloat16))(y_f, (1, L), axes=(1, 2))[:, 0, :S, :]
        y = y + kv * ssm_D[None, None, :]
        return q * y

    def _B_ref(x, W_gate, W_up, W_down):
        gate = torch.einsum("bsd,df->bsf", x, W_gate)
        up = torch.einsum("bsd,df->bsf", x, W_up)
        gate = gate * (lambda x, dt: x.to(dt))(gate > 0, gate.dtype)
        h = gate * up
        return torch.einsum("bsf,fd->bsd", h, W_down)

    x = A_q
    xn = _layernorm(x, axis=-1)
    return x + _A_ref(xn, A_k, A_v, A_shift_k, A_ssm_k, A_ssm_D) + _B_ref(xn, B_W_gate, B_W_up, B_W_down)
```

```python
import re, subprocess, os, sys

REG_RE = re.compile(r'^(-?)(abs\()?([vas])(?:(\d+)|\[(\d+):(\d+)\])\)?$')

def regs_of(tok):
    tok = tok.strip()
    neg = tok.lstrip('-')
    if neg.startswith('|') and neg.endswith('|'): neg = neg[1:-1]
    m = re.match(r'^([vas])(?:(\d+)|\[(\d+):(\d+)\])$', neg)
    if m:
        f = m.group(1)
        if m.group(2) is not None:
            return [(f, int(m.group(2)))]
        return [(f, r) for r in range(int(m.group(3)), int(m.group(4)) + 1)]
    if neg == 'vcc': return [('s', 106), ('s', 107)]
    if neg == 'vcc_lo': return [('s', 106)]
    if neg == 'vcc_hi': return [('s', 107)]
    if neg == 'm0': return [('s', 124)]
    if neg == 'exec': return [('s', 126), ('s', 127)]
    if neg == 'scc': return [('s', 200)]
    return []

TRANS = ('v_exp_f32', 'v_log_f32', 'v_rcp_f32', 'v_rsq_f32', 'v_sqrt_f32', 'v_sin_f32', 'v_cos_f32', 'v_rcp_iflag_f32')

class Ins:
    __slots__ = ('text', 'op', 'kind', 'rd', 'wr', 'size', 'tok', 'need', 'cost', 'tag', 'srcC', 'raw')
    def __init__(self, text, tok=None, need=None, tag=None):
        self.text = text.strip()
        self.tok = tok
        self.need = need
        self.tag = tag
        self.size = None
        self.srcC = []
        self.raw = False
        self.parse()
    def parse(self):
        t = self.text
        self.rd, self.wr = set(), set()
        if t.endswith(':') or t.startswith('.') or t.startswith(';') or t == '':
            self.op, self.kind = '', 'label' if t.endswith(':') else 'dir'
            return
        parts = t.split(None, 1)
        op = parts[0]; self.op = op
        rest = parts[1] if len(parts) > 1 else ''
        rest = rest.split(';')[0]
        ops = [o.strip() for o in rest.split(',')] if rest.strip() else []
        mods = ''
        if ops:
            last = ops[-1].split(None, 1)
            if last:
                ops[-1] = last[0]
                mods = last[1] if len(last) > 1 else ''
        R = regs_of
        base = re.sub(r'_(e32|e64|dpp|sdwa)$', '', op)
        if op.startswith('v_mfma'):
            self.kind = 'mfma'
            self.wr.update(R(ops[0]))
            for o in ops[1:4]: self.rd.update(R(o))
            self.srcC = R(ops[3])
        elif op.startswith('ds_'):
            self.kind = 'ds'
            if op.startswith('ds_read') or op.startswith('ds_bpermute') or op.startswith('ds_swizzle'):
                self.wr.update(R(ops[0]))
                for o in ops[1:]: self.rd.update(R(o))
            else:
                for o in ops: self.rd.update(R(o))
        elif op.startswith('buffer_') or op.startswith('global_'):
            self.kind = 'vm'
            islds = ' lds' in (' ' + mods) or op.startswith('global_load_lds')
            if op in ('buffer_wbl2', 'buffer_inv'):
                pass
            elif 'load' in op and not islds:
                self.wr.update(R(ops[0]))
                for o in ops[1:]: self.rd.update(R(o))
            elif islds:
                for o in ops: self.rd.update(R(o))
                self.rd.add(('s', 124))
            else:
                for o in ops: self.rd.update(R(o))
                if 'atomic' in op and 'sc0' in mods: self.wr.update(R(ops[0]))
        elif op.startswith('s_'):
            if op in ('s_waitcnt', 's_nop', 's_barrier', 's_endpgm', 's_sleep', 's_setprio', 's_branch'):
                self.kind = {'s_waitcnt': 'wait', 's_nop': 'nop', 's_barrier': 'barrier'}.get(op, 'salu')
            elif op.startswith('s_cbranch'):
                self.kind = 'salu'
                if 'scc' in op: self.rd.add(('s', 200))
                if 'vcc' in op: self.rd.update(R('vcc'))
                if 'exec' in op: self.rd.update(R('exec'))
            elif op.startswith('s_load') or op.startswith('s_memrealtime') or op.startswith('s_memtime'):
                self.kind = 'smem'
                self.wr.update(R(ops[0]))
                for o in ops[1:]: self.rd.update(R(o))
            elif op.startswith('s_cmp') or op.startswith('s_bitcmp'):
                self.kind = 'salu'
                for o in ops: self.rd.update(R(o))
                self.wr.add(('s', 200))
            else:
                self.kind = 'salu'
                self.wr.update(R(ops[0]))
                for o in ops[1:]: self.rd.update(R(o))
                if op.startswith('s_cselect') or op.startswith('s_addc') or op.startswith('s_subb'): self.rd.add(('s', 200))
                if 'saveexec' in op:
                    self.rd.update(R('exec')); self.wr.update(R('exec'))
                if not (op.startswith('s_mov') or op.startswith('s_cselect') or op.startswith('s_getreg') or op.startswith('s_getpc') or op.startswith('s_mul')):
                    self.wr.add(('s', 200))
                if op in ('s_addk_i32', 's_mulk_i32'): self.rd.update(R(ops[0]))
        elif op.startswith('v_'):
            self.kind = 'valu'
            if base.startswith('v_cmp'):
                self.wr.update(R(ops[0]))
                for o in ops[1:]: self.rd.update(R(o))
            elif base.startswith('v_permlane'):
                for o in ops[:2]:
                    self.rd.update(R(o)); self.wr.update(R(o))
            elif base in ('v_add_co_u32', 'v_sub_co_u32', 'v_addc_co_u32', 'v_subb_co_u32'):
                self.wr.update(R(ops[0])); self.wr.update(R(ops[1]))
                for o in ops[2:]: self.rd.update(R(o))
            else:
                self.wr.update(R(ops[0]))
                for o in ops[1:]: self.rd.update(R(o))
                if base in ('v_fmac_f32', 'v_dot2c_f32_bf16', 'v_writelane_b32'): self.rd.update(R(ops[0]))
                if base == 'v_cndmask_b32' and len(ops) == 3: self.rd.update(R('vcc'))
                if 'dpp' in op or 'row_' in mods or 'quad_perm' in mods or 'wave_' in mods:
                    self.rd.update(R(ops[0]))
        else:
            raise ValueError("unknown instruction: " + t)
    def passes(self):
        return 8 if '32x32' in self.op else 4
    def __repr__(self):
        return self.text

class Prog:
    def __init__(self):
        self.ins = []
    def __call__(self, text, tok=None, need=None, tag=None):
        out = []
        for l in text.split('\n'):
            l = l.strip()
            if not l: continue
            i = Ins(l, tok=tok, need=need, tag=tag)
            self.ins.append(i); out.append(i)
        return out
    def raw(self, text):
        out = self(text)
        for i in out: i.raw = True
        return out
    def add(self, lst):
        self.ins.extend(lst)
    def wait(self, *toks):
        i = Ins('; wait ' + ' '.join(map(str, toks)))
        i.kind = 'pwait'; i.need = list(toks)
        self.ins.append(i)
        return i

def is_code(i):
    return i.kind not in ('label', 'dir', 'pwait')

def insert_waits(ins):
    out = []
    vm, lg = [], []
    def need_count(q, pred):
        idx = None
        for k, o in enumerate(q):
            if pred(o): idx = k
        if idx is None: return None
        return len(q) - 1 - idx
    for i in ins:
        if i.kind in ('label', 'dir') or i.raw:
            out.append(i); continue
        touched = (i.rd | i.wr) if is_code(i) else set()
        toks = set(i.need or [])
        nv = need_count(vm, lambda o: (o['regs'] & touched) or (o['tok'] in toks and o['tok'] is not None))
        nl = need_count(lg, lambda o: (o['regs'] & touched) or (o['tok'] in toks and o['tok'] is not None))
        if nl is not None and any(o.get('smem') for o in lg): nl = 0
        w = []
        if nv is not None:
            if nv < 63: w.append(f'vmcnt({nv})')
            vm = vm[len(vm) - nv:] if nv > 0 else []
        if nl is not None:
            if nl < 15: w.append(f'lgkmcnt({nl})')
            lg = lg[len(lg) - nl:] if nl > 0 else []
        if w:
            out.append(Ins('s_waitcnt ' + ' '.join(w)))
        if i.kind == 'pwait':
            continue
        if i.kind == 'wait':
            m = re.search(r'vmcnt\((\d+)\)', i.text)
            if m:
                n = int(m.group(1)); vm = vm[len(vm) - n:] if 0 < n < len(vm) else ([] if n == 0 else vm)
            m = re.search(r'lgkmcnt\((\d+)\)', i.text)
            if m:
                n = int(m.group(1)); lg = lg[len(lg) - n:] if 0 < n < len(lg) else ([] if n == 0 else lg)
        out.append(i)
        if i.kind == 'vm':
            vm.append(dict(regs=set(i.wr), tok=i.tok))
            if len(vm) > 63: vm = vm[-63:]
        elif i.kind == 'ds':
            lg.append(dict(regs=set(i.wr), tok=i.tok))
            if len(lg) > 15: lg = lg[-15:]
        elif i.kind == 'smem':
            lg.append(dict(regs=set(i.wr), tok=i.tok, smem=True))
    return out

def states(i):
    if i.kind == 'nop':
        return int(i.text.split()[1]) + 1
    return 1

def isv(r): return r[0] in 'va'

def insert_hazard_nops(ins, verbose=False):
    out = []
    hist = []
    nins = 0
    for i in ins:
        if not is_code(i):
            out.append(i); continue
        need = 0
        dist = 0
        for p in reversed(hist):
            if dist > 24: break
            req = 0
            pw = p.wr;
            if p.kind == 'mfma':
                big = p.passes() == 8
                ov_w = pw & (i.rd | i.wr)
                if ov_w:
                    if i.kind == 'mfma':
                        c = set(i.srcC)
                        ab = i.rd - c if not (set(i.srcC) & (i.rd - c)) else i.rd
                        ops = i.text.split(None, 1)[1].split(',')
                        A = set(regs_of(ops[1])) | set(regs_of(ops[2]))
                        if pw & A: req = max(req, 12 if big else 8)
                        if pw & c:
                            if not (pw == c and p.passes() == i.passes()): req = max(req, 10 if big else 6)
                        if (pw & i.wr) and not (pw & c):
                            req = max(req, 12 if big else 8)
                    else:
                        req = max(req, 12 if big else 8)
                if i.kind == 'valu' and (set(p.srcC) & i.wr):
                    req = max(req, 7 if big else 3)
            elif p.kind == 'valu':
                vw = {r for r in pw if isv(r)}
                sw = {r for r in pw if r[0] == 's'}
                if i.kind == 'mfma' and (vw & i.rd): req = max(req, 2)
                if i.kind == 'valu':
                    if i.op.startswith('v_permlane') and (vw & (i.rd | i.wr)): req = max(req, 2)
                    if (i.op.startswith('v_readfirstlane') or i.op.startswith('v_readlane')) and (vw & i.rd): req = max(req, 1)
                    if ('dpp' in i.text or 'row_' in i.text) and (vw & i.rd): req = max(req, 2)
                    if re.sub(r'_(e32|e64)$', '', p.op) in TRANS and (vw & i.rd): req = max(req, 1)
                    if sw & i.rd: req = max(req, 2)
                    if (i.op.startswith('v_readlane') or i.op.startswith('v_writelane')) and (sw & i.rd): req = max(req, 4)
                if i.kind == 'vm' and (sw & i.rd): req = max(req, 5)
                if i.kind in ('salu', 'smem') and (sw & i.rd): req = max(req, 4)
                if i.kind == 'mfma' and (('s', 126) in pw): req = max(req, 4)
            elif p.kind == 'salu':
                if ('s', 124) in pw and i.kind == 'vm' and ('s', 124) in i.rd: req = max(req, 1)
            elif p.kind == 'vm':
                if ('store_dwordx4' in p.op or 'store_dwordx3' in p.op):
                    if (i.kind == 'valu' and (p.rd & i.wr & {r for r in p.rd if isv(r)})): req = max(req, 2)
                    elif (p.rd & i.wr & {r for r in p.rd if isv(r)}): req = max(req, 1)
            if req > dist: need = max(need, req - dist)
            dist += states(p)
        while need > 0:
            n = min(need, 16)
            nop = Ins(f's_nop {n-1}')
            out.append(nop); hist.append(nop); need -= n; nins += 1
        out.append(i); hist.append(i)
        if len(hist) > 40: hist = hist[-40:]
    if verbose: print("hazard nops inserted:", nins, file=sys.stderr)
    return out

PROMOTABLE = re.compile(r'^v_(mov_b32|add_f32|sub_f32|subrev_f32|mul_f32|max_f32|min_f32|add_u32|sub_u32|subrev_u32|and_b32|or_b32|xor_b32|lshlrev_b32|lshrrev_b32|ashrrev_i32|cvt_f32_u32|cvt_f32_i32|cvt_u32_f32|rcp_f32|rsq_f32|sqrt_f32|mul_u32_u24|accvgpr_read_b32|accvgpr_write_b32|max_u32|min_u32|max_i32|min_i32|fmac_f32|cndmask_b32)$')

def measure_sizes(ins, header, tmpbase):
    src = header + '\n'.join(i.text for i in ins if i.kind != 'pwait') + '\n'
    open(tmpbase + '.s', 'w').write(src)
    r = subprocess.run(['clang', '-x', 'assembler', '-target', 'amdgcn-amd-amdhsa', '-mcpu=gfx950', '-c', tmpbase + '.s', '-o', tmpbase + '.o'], capture_output=True, text=True)
    if r.returncode: raise RuntimeError(r.stderr[:4000])
    d = subprocess.run(['llvm-objdump', '-d', '--mcpu=gfx950', tmpbase + '.o'], capture_output=True, text=True).stdout
    sizes = []
    for l in d.split('\n'):
        m = re.search(r'//\s+([0-9A-Fa-f]{12}):((?:\s[0-9A-Fa-f]{8})+)', l)
        if m: sizes.append(4 * len(m.group(2).split()))
    code = [i for i in ins if is_code(i)]
    assert len(code) == len(sizes), (len(code), len(sizes))
    for i, s in zip(code, sizes): i.size = s

def align8(ins):
    out = []
    off = 0
    last_prom = None
    npad = nprom = 0
    for i in ins:
        if i.kind == 'dir' and i.text.startswith('.p2align'):
            off = 0; last_prom = None; out.append(i); continue
        if not is_code(i):
            out.append(i); continue
        if i.size == 8 and off % 8 == 4:
            if last_prom is not None:
                p = out[last_prom]
                parts = p.text.split(None, 1)
                p.text = parts[0] + '_e64 ' + parts[1]; p.size = 8; nprom += 1
            else:
                n = Ins('s_nop 0'); n.size = 4; out.append(n); npad += 1
            off += 4; last_prom = None
        out.append(i)
        if i.size == 4 and i.kind == 'valu' and PROMOTABLE.match(i.op) and not re.search(r'0x[0-9a-fA-F]+', i.text):
            last_prom = len(out) - 1
        elif i.size == 8:
            last_prom = None
        off += i.size
        if off % 8 == 0: last_prom = None
    return out, nprom, npad

def finalize(prog, header, tmpbase, do_align=True, verbose=True):
    ins = insert_waits(prog.ins)
    ins = insert_hazard_nops(ins, verbose)
    if do_align:
        measure_sizes(ins, header, tmpbase)
        ins, a, b = align8(ins)
        if verbose: print(f"align: promoted {a}, padded {b}; code bytes", sum(i.size for i in ins if is_code(i)), file=sys.stderr)
    return ins

def weave(main, fillers, slots):
    out = []
    f = 0
    nm = 0
    j = 0
    n = len(main)
    while j < n:
        i = main[j]; out.append(i); j += 1
        if i.kind == 'mfma':
            nm += 1
            own = 0
            k = j
            while k < n and main[k].kind != 'mfma':
                if is_code(main[k]): own += 1
                k += 1
            free = slots(i) - own
            while free > 0 and f < len(fillers):
                g = fillers[f]
                if isinstance(g.tag, tuple) and g.tag[0] == 'after' and nm < g.tag[1]: break
                out.append(g); f += 1
                if is_code(g): free -= 1
    out.extend(fillers[f:])
    return out
```

```python
import sys
from fw import *

KNAME = "parallel_sum__ssm_conv_h3__glu_gated_reglu__prompt_kernel"
NWG = 224
S, D, F = 2048, 448, 1792

WS_FLAG = 0x0
WS_F0, WS_F1, WS_F2 = 0x0, 0x1000, 0x4000
WS_STAMP = 0x10000
WS_KVR = 0x100000
WS_YT = 0x300000
WS_ST = 0x500000
WS_H = 0x600000
WS_BYTES = 0x1000000

XSLOT = lambda k: 16384 * k
WSLOT = lambda k: 65536 + 16384 * k
L_MISC = 147456
L_KT = L_MISC
L_M = L_MISC + 8192
L_C = L_M + 512
L_H = 0; HSTR = 4160; HCH = 4 * HSTR
L_XR = 2 * HCH; XRSTR = 4608
L_WD = 49152
L_RED = 0
L_QT = 49152; L_YT = L_QT + 8192; L_OT = L_YT + 8192
LDS_BYTES = 163840

sQ, sK, sV, sSK, sSSM, sWG, sWW, sWD, sOUT, sWS, sDBG, sSD = 4, 8, 12, 16, 20, 24, 28, 32, 36, 40, 44, 48
P = 52
s_w, s_wt, s_wf, s_x, s_i = 78, 79, 80, 81, 82
s_rbk, s_fs, s_rb, s_cb = 83, 84, 85, 86
s_nonce = 87
s_t0, s_t1, s_t2, s_t3 = 88, 89, 90, 91
s_w4k = 92
s_c = 52
s_cw = 59
s_h0, s_h1 = 66, 67
s_off = 68
s_sv = 70
s_cnt = 72
s_ta, s_tb = 74, 76
s_T = 94

def srd(p, r, ptr, nbytes):
    p(f"s_mov_b32 s{r}, s{ptr}")
    p(f"s_and_b32 s{r+1}, s{ptr+1}, 0xffff")
    p(f"s_mov_b32 s{r+2}, {nbytes}")
    p(f"s_mov_b32 s{r+3}, 0x20000")

STAMPS = False
def stamp(p, k):
    if not STAMPS: return
    L = f"L_stamp_{k}"
    p.raw(f"s_cmp_lg_u32 s{s_w}, 0")
    p.raw(f"s_cbranch_scc1 {L}")
    p.raw(f"s_memrealtime s[{s_T}:{s_T+1}]")
    p.raw(f"s_lshl_b32 s96, s2, 7")
    p.raw(f"s_add_u32 s96, s96, {WS_STAMP + 8*k}")
    p.raw("s_waitcnt lgkmcnt(0)")
    p.raw(f"v_mov_b32 v12, s{s_T}")
    p.raw(f"v_mov_b32 v13, s{s_T+1}")
    p.raw(f"v_mov_b32 v14, 0")
    p.raw(f"s_mov_b64 s[98:99], exec")
    p.raw(f"s_mov_b64 exec, 1")
    p.raw(f"buffer_store_dwordx2 v[12:13], v14, s[{sWS}:{sWS+3}], s96 offen")
    p.raw(f"s_mov_b64 exec, s[98:99]")
    p.raw(f"{L}:")
    i = Ins("s_nop 0"); p.ins.append(i)

def prologue(p):
    p(f"s_cmp_ge_u32 s2, {NWG}")
    p("s_cbranch_scc1 L_end")
    p(f"s_load_dwordx16 s[{P}:{P+15}], s[0:1], 0")
    p(f"s_load_dwordx8 s[{P+16}:{P+23}], s[0:1], 64")
    p(f"s_load_dwordx2 s[{P+24}:{P+25}], s[0:1], 96")
    p("v_lshrrev_b32 v3, 6, v0")
    p("v_and_b32 v1, 63, v0")
    p(f"v_readfirstlane_b32 s{s_w}, v3")
    p("v_lshlrev_b32 v2, 4, v1")
    p(f"s_and_b32 s{s_x}, s2, 7")
    p(f"s_lshr_b32 s{s_i}, s2, 3")
    p(f"s_mul_i32 s{s_t0}, s{s_i}, 37")
    p(f"s_lshr_b32 s{s_t0}, s{s_t0}, 8")
    p(f"s_mul_i32 s{s_t1}, s{s_t0}, 7")
    p(f"s_sub_u32 s{s_cb}, s{s_i}, s{s_t1}")
    p(f"s_lshl_b32 s{s_rb}, s{s_x}, 2")
    p(f"s_add_u32 s{s_rb}, s{s_rb}, s{s_t0}")
    p(f"s_lshr_b32 s{s_t1}, s{s_x}, 1")
    p(f"s_lshl_b32 s{s_t1}, s{s_t1}, 2")
    p(f"s_add_u32 s{s_rbk}, s{s_t1}, s{s_t0}")
    p(f"s_and_b32 s{s_t1}, s{s_x}, 1")
    p(f"s_mul_i32 s{s_t1}, s{s_t1}, 7")
    p(f"s_add_u32 s{s_fs}, s{s_t1}, s{s_cb}")
    p(f"s_and_b32 s{s_wt}, s{s_w}, 1")
    p(f"s_lshr_b32 s{s_wf}, s{s_w}, 1")
    p(f"s_lshl_b32 s{s_w4k}, s{s_w}, 12")
    p("s_waitcnt lgkmcnt(0)")
    ptr = lambda n: P + 2 * n
    srd(p, sQ, ptr(0), S*D*2); srd(p, sK, ptr(1), S*D*2); srd(p, sV, ptr(2), S*D*2)
    srd(p, sSK, ptr(3), D*4*2); srd(p, sSD, ptr(5), D*2)
    srd(p, sWG, ptr(7), D*F*2)
    p(f"s_cmp_eq_u32 s{s_wf}, 0")
    p(f"s_cselect_b32 s{sWW}, s{ptr(7)}, s{ptr(8)}")
    p(f"s_cselect_b32 s{sWW+1}, s{ptr(7)+1}, s{ptr(8)+1}")
    p(f"s_and_b32 s{sWW+1}, s{sWW+1}, 0xffff")
    p(f"s_mov_b32 s{sWW+2}, {D*F*2}")
    p(f"s_mov_b32 s{sWW+3}, 0x20000")
    srd(p, sWD, ptr(9), D*F*2); srd(p, sOUT, ptr(10), S*D*2)
    srd(p, sDBG, ptr(11), 256); srd(p, sWS, ptr(12), WS_BYTES)
    srd(p, sSSM, ptr(4), S*D*2)
    p(f"s_or_b32 s{s_t0}, s2, s{s_w}")
    p(f"s_cmp_lg_u32 s{s_t0}, 0")
    p("s_cbranch_scc1 L_nononce")
    p.raw(f"s_memrealtime s[{s_T}:{s_T+1}]")
    p.raw("s_waitcnt lgkmcnt(0)")
    p.raw(f"s_or_b32 s{s_T}, s{s_T}, 1")
    p.raw(f"v_mov_b32 v4, s{s_T}")
    p.raw("v_mov_b32 v5, 0")
    p.raw(f"buffer_store_dword v4, v5, s[{sDBG}:{sDBG+3}], 0 offen sc1")
    p.raw("s_waitcnt vmcnt(0)")
    p("L_nononce:")
    p(f"s_lshr_b32 s{s_t0}, s{s_fs}, 1")
    for c in range(7):
        p(f"s_add_u32 s{s_t1}, s{s_t0}, {c}")
        p(f"s_cmp_ge_u32 s{s_t1}, 7")
        p(f"s_cselect_b32 s{s_t2}, 7, 0")
        p(f"s_sub_u32 s{s_t1}, s{s_t1}, s{s_t2}")
        p(f"s_lshl_b32 s{s_c+c}, s{s_t1}, 7")
        p(f"s_mul_i32 s{s_cw+c}, s{s_t1}, 229376")

def get_nonce(p, tag):
    p.raw(f"s_mov_b32 s{s_cnt}, 0")
    p.raw("v_mov_b32 v5, 0")
    p.raw(f"L_nonce_{tag}:")
    p.raw(f"buffer_load_dword v4, v5, s[{sDBG}:{sDBG+3}], 0 offen sc1")
    p.raw(f"s_add_u32 s{s_cnt}, s{s_cnt}, 1")
    p.raw("s_waitcnt vmcnt(0)")
    p.raw(f"v_readfirstlane_b32 s{s_nonce}, v4")
    p.raw(f"s_cmp_gt_u32 s{s_cnt}, 100000")
    p.raw(f"s_cbranch_scc1 L_nonce_{tag}_done")
    p.raw(f"s_cmp_eq_u32 s{s_nonce}, 0")
    p.raw(f"s_cbranch_scc1 L_nonce_{tag}")
    p.raw(f"L_nonce_{tag}_done:")
    p("s_waitcnt vmcnt(0)")

def post_flag(p, soff_reg, tag):
    p("s_waitcnt vmcnt(0) lgkmcnt(0)")
    p("s_barrier")
    p(f"s_cmp_lg_u32 s{s_w}, 0")
    p(f"s_cbranch_scc1 L_pf_{tag}")
    p.raw(f"v_mov_b32 v4, s{s_nonce}")
    p.raw("v_mov_b32 v5, 0")
    p.raw(f"s_mov_b64 s[{s_sv}:{s_sv+1}], exec")
    p.raw("s_mov_b64 exec, 1")
    p.raw(f"buffer_store_dword v4, v5, s[{sWS}:{sWS+3}], s{soff_reg} offen sc1")
    p.raw(f"s_mov_b64 exec, s[{s_sv}:{s_sv+1}]")
    p.raw("s_waitcnt vmcnt(0)")
    p(f"L_pf_{tag}:")

def wait_flags(p, soff_reg, count, tag):
    p("s_waitcnt vmcnt(0)")
    p.raw(f"v_min_u32 v5, {count-1}, v1")
    p.raw("v_lshlrev_b32 v5, 2, v5")
    p.raw(f"s_mov_b32 s{s_cnt}, 0")
    p.raw(f"L_wf_{tag}:")
    p.raw(f"buffer_load_dword v4, v5, s[{sWS}:{sWS+3}], s{soff_reg} offen sc1")
    p.raw(f"s_add_u32 s{s_cnt}, s{s_cnt}, 1")
    p.raw("s_waitcnt vmcnt(0)")
    p.raw(f"v_cmp_ne_u32 vcc, s{s_nonce}, v4")
    p.raw(f"s_cmp_gt_u32 s{s_cnt}, 100000")
    p.raw(f"s_cbranch_scc1 L_wf_{tag}_done")
    p.raw("s_cmp_lg_u64 vcc, 0")
    p.raw(f"s_cbranch_scc1 L_wf_{tag}")
    p.raw(f"L_wf_{tag}_done:")
    p("s_nop 0")

def phase0(p):
    T = 192
    vk = [T + 4*j for j in range(5)]
    vv = [T + 20, T + 24]
    vw = T + 28
    off = [8, 9, 10, 11]
    p("v_and_b32 v4, 7, v0")
    p("v_lshrrev_b32 v5, 3, v0")
    p(f"s_lshl_b32 s{s_t0}, s{s_rb}, 6")
    p("v_lshlrev_b32 v6, 1, v5")
    p(f"v_add_u32 v6, s{s_t0}, v6")
    p(f"s_lshl_b32 s{s_t1}, s{s_cb}, 7")
    p("v_lshlrev_b32 v7, 4, v4")
    p(f"v_add_u32 v7, s{s_t1}, v7")
    p("v_mul_u32_u24 v8, 896, v6")
    p("v_add_u32 v11, v8, v7")
    p("v_subrev_u32 v8, 2688, v11")
    p("v_subrev_u32 v9, 1792, v11")
    p("v_subrev_u32 v10, 896, v11")
    for j in range(3):
        p(f"buffer_load_dwordx4 v[{vk[j]}:{vk[j]+3}], v{8+j}, s[{sK}:{sK+3}], 0 offen")
    p(f"buffer_load_dwordx4 v[{vk[3]}:{vk[3]+3}], v11, s[{sK}:{sK+3}], 0 offen")
    p(f"buffer_load_dwordx4 v[{vk[4]}:{vk[4]+3}], v11, s[{sK}:{sK+3}], 0 offen offset:896")
    p(f"buffer_load_dwordx4 v[{vv[0]}:{vv[0]+3}], v11, s[{sV}:{sV+3}], 0 offen")
    p(f"buffer_load_dwordx4 v[{vv[1]}:{vv[1]+3}], v11, s[{sV}:{sV+3}], 0 offen offset:896")
    p("v_lshlrev_b32 v12, 2, v7")
    for j in range(4):
        p(f"buffer_load_dwordx4 v[{vw+4*j}:{vw+4*j+3}], v12, s[{sSK}:{sSK+3}], 0 offen offset:{16*j}")
    p("v_sub_u32 v13, 31, v5")
    p("v_lshrrev_b32 v14, 2, v13")
    p("v_xor_b32 v14, v14, v4")
    p("v_lshlrev_b32 v14, 4, v14")
    p("v_and_b32 v13, 3, v13")
    p("v_lshl_add_u32 v14, v13, 2, v14")
    p("v_lshl_add_u32 v14, v4, 10, v14")
    p(f"v_add_u32 v14, {L_KT}, v14")
    cmp = []
    t = T + 44
    for e in range(8):
        d, hi = e // 2, e % 2
        def unp(dst, src):
            return f"v_and_b32 v{dst}, 0xffff0000, v{src}" if hi else f"v_lshlrev_b32 v{dst}, 16, v{src}"
        for j in range(5): p(unp(t + j, vk[j] + d))
        p(unp(t + 5, vv[0] + d)); p(unp(t + 6, vv[1] + d))
        w01, w23 = vw + 2*e, vw + 2*e + 1
        p(f"v_lshlrev_b32 v{t+7}, 16, v{w01}")
        p(f"v_and_b32 v{t+8}, 0xffff0000, v{w01}")
        p(f"v_lshlrev_b32 v{t+9}, 16, v{w23}")
        p(f"v_and_b32 v{t+10}, 0xffff0000, v{w23}")
        p(f"v_mul_f32 v{t+11}, v{t}, v{t+10}")
        p(f"v_mul_f32 v{t+12}, v{t+1}, v{t+10}")
        p(f"v_fmac_f32 v{t+11}, v{t+1}, v{t+9}")
        p(f"v_fmac_f32 v{t+12}, v{t+2}, v{t+9}")
        p(f"v_fmac_f32 v{t+11}, v{t+2}, v{t+8}")
        p(f"v_fmac_f32 v{t+12}, v{t+3}, v{t+8}")
        p(f"v_fmac_f32 v{t+11}, v{t+3}, v{t+7}")
        p(f"v_fmac_f32 v{t+12}, v{t+4}, v{t+7}")
        p(f"v_mul_f32 v{t+11}, v{t+11}, v{t+5}")
        p(f"v_mul_f32 v{t+12}, v{t+12}, v{t+6}")
        p(f"v_cvt_pk_bf16_f32 v{t+13+(e%2)}, v{t+12}, v{t+11}")
        p(f"ds_write_b32 v14, v{t+13+(e%2)} offset:{128*e}", tok='kt')
    p.wait('kt')
    p("s_barrier")
    p("v_lshrrev_b32 v8, 3, v5")
    p("v_xor_b32 v8, v8, v4")
    p("v_lshlrev_b32 v8, 4, v8")
    p("v_lshl_add_u32 v8, v5, 7, v8")
    p(f"v_add_u32 v8, {L_KT}, v8")
    p("v_xor_b32 v9, 64, v8")
    p(f"ds_read_b128 v[{T}:{T+3}], v8")
    p(f"ds_read_b128 v[{T+4}:{T+7}], v9 offset:4096")
    p("v_lshlrev_b32 v10, 12, v5")
    p("v_lshl_add_u32 v10, v4, 4, v10")
    p(f"s_lshl_b32 s{s_t0}, s{s_cb}, 18")
    p(f"s_lshl_b32 s{s_t1}, s{s_rb}, 7")
    p(f"s_sub_u32 s{s_t0}, s{s_t0}, s{s_t1}")
    p(f"s_add_u32 s{s_off}, s{s_t0}, {WS_KVR + 3968}")
    p(f"s_add_u32 s{s_off+1}, s{s_off}, {32*4096}")
    p(f"buffer_store_dwordx4 v[{T}:{T+3}], v10, s[{sWS}:{sWS+3}], s{s_off} offen sc1")
    p(f"buffer_store_dwordx4 v[{T+4}:{T+7}], v10, s[{sWS}:{sWS+3}], s{s_off+1} offen sc1")

vXD, vWDm, vXR, vA0, vA1 = 16, 20, 24, 32, 36
vSEL, vMS, vCG, vCU = 40, 44, 48, 52
ACC = lambda bank, mat, n: 128 + 64*bank + 32*mat + 16*n
XF = lambda g, n: (g*2 + n) * 4
AF = lambda buf, mat: 224 + 8*buf + 4*mat

def g1_setup(p):
    p("v_lshrrev_b32 v4, 3, v1")
    p("v_and_b32 v5, 7, v1")
    p("v_lshrrev_b32 v6, 4, v1")
    p("v_xor_b32 v7, v5, v6")
    p("v_lshlrev_b32 v7, 4, v7")
    p(f"s_lshl_b32 s{s_t0}, s{s_rbk}, 7")
    p(f"s_lshl_b32 s{s_t1}, s{s_w}, 5")
    p(f"s_add_u32 s{s_t0}, s{s_t0}, s{s_t1}")
    p(f"v_add_u32 v8, s{s_t0}, v4")
    p("v_mul_u32_u24 v8, 896, v8")
    p(f"v_add_u32 v{vXD}, v8, v7")
    p(f"v_add_u32 v{vXD+2}, {2*6144}, v{vXD}")
    p(f"v_xor_b32 v{vXD+1}, 64, v{vXD}")
    p(f"v_add_u32 v{vXD+3}, {3*6144}, v{vXD+1}")
    p(f"v_add_u32 v{vXD+1}, {6144}, v{vXD+1}")
    p("v_and_b32 v7, 1, v6")
    p("v_lshlrev_b32 v7, 2, v7")
    p("v_xor_b32 v7, v5, v7")
    p("v_lshlrev_b32 v7, 4, v7")
    p(f"s_lshl_b32 s{s_t0}, s{s_wt}, 5")
    p(f"v_add_u32 v8, s{s_t0}, v4")
    p("v_mul_u32_u24 v8, 3584, v8")
    p(f"s_lshl_b32 s{s_t1}, s{s_fs}, 8")
    p(f"v_add3_u32 v{vWDm}, v8, v7, s{s_t1}")
    for j in range(1, 4):
        p(f"v_add_u32 v{vWDm+j}, {j*(8*3584-1024)}, v{vWDm}")
    p(f"s_and_b32 s{s_t0}, s{s_fs}, 1")
    p(f"s_lshl_b32 s{s_t0}, s{s_t0}, 1")
    p(f"s_xor_b32 s{s_t0}, s{s_t0}, s{s_wt}")
    p("v_and_b32 v4, 31, v1")
    p("v_lshrrev_b32 v5, 5, v1")
    p("v_lshrrev_b32 v6, 1, v4")
    p("v_and_b32 v6, 7, v6")
    p(f"s_lshl_b32 s{s_t1}, s{s_t0}, 1")
    p(f"v_or_b32 v7, s{s_t1}, v5")
    p("v_xor_b32 v7, v7, v6")
    p("v_lshlrev_b32 v7, 4, v7")
    p("v_lshl_add_u32 v7, v4, 7, v7")
    p(f"s_lshl_b32 s{s_t1}, s{s_wt}, 13")
    p(f"s_lshl_b32 s{s_t2}, s{s_wf}, 12")
    p(f"s_add_u32 s{s_t1}, s{s_t1}, s{s_t2}")
    p(f"v_add_u32 v7, s{s_t1}, v7")
    for sp in range(4):
        p(f"v_xor_b32 v{vXR+2*sp}, {32*sp}, v7")
        p(f"v_xor_b32 v{vXR+2*sp+1}, {32*sp + 4096}, v7")
    p("v_and_b32 v4, 3, v1")
    p("v_bfe_u32 v5, v1, 2, 2")
    p("v_bfe_u32 v6, v1, 4, 1")
    p("v_lshrrev_b32 v7, 5, v1")
    p("v_lshrrev_b32 v8, 1, v5")
    p(f"v_xor_b32 v8, s{s_wf}, v8")
    p("v_lshlrev_b32 v8, 6, v8")
    p("v_lshl_add_u32 v8, v6, 5, v8")
    p("v_lshl_add_u32 v8, v4, 3, v8")
    p("v_lshl_add_u32 v8, v5, 7, v8")
    p("v_lshl_add_u32 v8, v7, 10, v8")
    p(f"s_lshl_b32 s{s_t1}, s{s_t0}, 11")
    p(f"v_add_u32 v8, s{s_t1}, v8")
    for sp in range(4):
        p(f"v_xor_b32 v{vA0+sp}, {2048*sp}, v8")
        p(f"v_add_u32 v{vA1+sp}, 65536, v{vA0+sp}")
    p("v_and_b32 v4, 15, v1")
    p("v_bfe_u32 v5, v1, 4, 1")
    p("v_cmp_eq_u32 vcc, v4, v5")
    p("v_mov_b32 v6, 0x3f803f80")
    for j in range(4):
        p(f"v_cndmask_b32 v{vSEL+j}, 0, v6, vcc")
    for j in range(12):
        p(f"v_mov_b32 v{vMS+j}, 0")
    p("v_mov_b32 v4, 0")
    p("v_lshlrev_b32 v5, 2, v0")
    p(f"ds_write_b32 v5, v4 offset:{L_C - 0}" if L_C < 65536 else "v_add_u32 v5, %d, v5" % L_C)
    if L_C >= 65536: p("ds_write_b32 v5, v4", tok='czero')
    p(f"s_lshl_b32 s{s_t0}, s{s_rbk}, 2")
    p(f"s_lshl_b32 s{s_t1}, s{s_wt}, 1")
    p(f"s_add_u32 s{s_t0}, s{s_t0}, s{s_t1}")
    p(f"s_add_u32 s{s_t1}, s{s_t0}, s{s_wf}")
    p(f"s_xor_b32 s{s_t2}, s{s_t1}, 1")
    p(f"s_lshl_b32 s{s_t3}, s{s_fs}, 2")
    p(f"s_add_u32 s{s_t3}, s{s_t3}, s{s_wf}")
    for r, src in ((s_h0, s_t1), (s_h1, s_t2)):
        p(f"s_mul_i32 s{r}, s{src}, 56")
        p(f"s_add_u32 s{r}, s{r}, s{s_t3}")
        p(f"s_lshl_b32 s{r}, s{r}, 11")
        p(f"s_add_u32 s{r}, s{r}, {WS_H}")

def dma_x(p, c, slot, tok):
    p(f"s_add_u32 m0, s{s_w4k}, {XSLOT(slot)}")
    for j in range(4):
        p(f"buffer_load_dwordx4 v{vXD+j}, s[{sQ}:{sQ+3}], s{s_c+c} offen offset:{1024*j} lds", tok=tok)

def dma_w(p, pas, c, lds, tok):
    p(f"s_add_u32 m0, s{s_w4k}, {lds}")
    if pas == 0:
        so = s_cw + c
    else:
        p(f"s_add_u32 s{s_off}, s{s_cw+c}, 128")
        so = s_off
    for j in range(4):
        p(f"buffer_load_dwordx4 v{vWDm+j}, s[{sWW}:{sWW+3}], s{so} offen offset:{1024*j} lds", tok=tok)

P2SLOT = [WSLOT(3), XSLOT(3), WSLOT(0), XSLOT(0), WSLOT(1), XSLOT(1), WSLOT(2)]

def a_reads(p, lds, sp, buf):
    base = vA1 if lds >= 65536 else vA0
    o = lds - 65536 if lds >= 65536 else lds
    for mat in range(2):
        for u in range(2):
            r = AF(buf, mat) + 2*u
            p(f"ds_read_b64_tr_b16 a[{r}:{r+1}], v{base+sp} offset:{o + 8192*mat + 512*u}")

def g1_step(p, pas, c, sp, lds_w, xslot, bank):
    g = 4*c + sp
    buf = g % 4
    if pas == 0:
        for n in range(2):
            r = XF(g, n)
            p(f"ds_read_b128 a[{r}:{r+3}], v{vXR+2*sp+n} offset:{XSLOT(xslot)}")
    a_reads(p, lds_w, sp, buf)
    first = (g == 0)
    for mat in range(2):
        for n in range(2):
            d = ACC(bank, mat, n); a = AF(buf, mat); b = XF(g, n)
            p(f"v_mfma_f32_32x32x16_bf16 v[{d}:{d+15}], a[{a}:{a+3}], a[{b}:{b+3}], " + ("0" if first else f"v[{d}:{d+15}]"))
    if pas == 0:
        b = XF(g, 0)
        p(f"v_mfma_f32_16x16x32_bf16 v[{vMS}:{vMS+3}], v[{vSEL}:{vSEL+3}], a[{b}:{b+3}], v[{vMS}:{vMS+3}]")
    if sp % 2 == 0:
        for mat, acc in ((0, vCG), (1, vCU)):
            a = AF(buf, mat)
            p(f"v_mfma_f32_16x16x32_bf16 v[{acc}:{acc+3}], v[{vSEL}:{vSEL+3}], a[{a}:{a+3}], v[{acc}:{acc+3}]")

def g1_select_out(p, pas):
    p(f"s_mov_b64 s[{s_sv}:{s_sv+1}], exec")
    p("s_mov_b64 exec, 0xffff")
    p("v_lshlrev_b32 v4, 2, v1")
    if pas == 0:
        p(f"s_mov_b32 s{s_t0}, 0x3b124925")
        for j in range(2):
            p(f"v_mul_f32 v{5+j}, s{s_t0}, v{vMS+j}")
        p("v_cvt_pk_bf16_f32 v7, v5, v6")
        p("v_lshlrev_b32 v5, 16, v7")
        p("v_and_b32 v6, 0xffff0000, v7")
        p(f"s_lshl_b32 s{s_t0}, s{s_wt}, 8")
        p(f"s_lshl_b32 s{s_t1}, s{s_wf}, 7")
        p(f"s_add_u32 s{s_t0}, s{s_t0}, s{s_t1}")
        p(f"s_add_u32 s{s_t0}, s{s_t0}, {L_M}")
        p(f"v_add_u32 v8, s{s_t0}, v4")
        p("ds_write_b32 v8, v5", tok='sel')
        p("ds_write_b32 v8, v6 offset:64", tok='sel')
    p(f"s_lshl_b32 s{s_t1}, s{s_wf}, 7")
    p(f"s_add_u32 s{s_t1}, s{s_t1}, {L_C + 512*pas}")
    p(f"v_add_u32 v8, s{s_t1}, v4")
    for mat, acc in ((0, vCG), (1, vCU)):
        for j in range(2):
            p(f"ds_add_f32 v8, v{acc+j} offset:{256*mat + 64*j}", tok='sel')
    p(f"s_mov_b64 exec, s[{s_sv}:{s_sv+1}]")
    if pas == 0:
        for j in range(8): p(f"v_mov_b32 v{vCG+j}, 0")

def g1_epilogue(p, pas, bank):
    cg, cu, vm = 56, 72, 88
    t = 96
    p("v_lshrrev_b32 v4, 5, v1")
    p("v_lshlrev_b32 v4, 4, v4")
    p(f"s_lshl_b32 s{s_t1}, s{s_wf}, 7")
    p(f"s_add_u32 s{s_t1}, s{s_t1}, {L_C + 512*pas}")
    p(f"v_add_u32 v4, s{s_t1}, v4")
    for g in range(4):
        p(f"ds_read_b128 v[{cg+4*g}:{cg+4*g+3}], v4 offset:{32*g}")
        p(f"ds_read_b128 v[{cu+4*g}:{cu+4*g+3}], v4 offset:{256+32*g}")
    if pas == 0:
        p("v_and_b32 v5, 31, v1")
        p("v_lshlrev_b32 v5, 2, v5")
        p(f"s_lshl_b32 s{s_t0}, s{s_wt}, 8")
        p(f"s_lshl_b32 s{s_t1}, s{s_wf}, 7")
        p(f"s_add_u32 s{s_t0}, s{s_t0}, s{s_t1}")
        p(f"s_add_u32 s{s_t0}, s{s_t0}, {L_M}")
        p(f"v_add_u32 v5, s{s_t0}, v5")
        p("v_xor_b32 v6, 128, v5")
        p(f"ds_read_b32 v{vm}, v5")
        p(f"ds_read_b32 v{vm+1}, v6")
    for n in range(2):
        G, U = ACC(bank, 0, n), ACC(bank, 1, n)
        for j in range(2):
            for e in range(8):
                i = 8*j + e
                p(f"v_fma_f32 v{G+i}, -v{vm+n}, v{cg+i}, v{G+i}")
                p(f"v_fma_f32 v{U+i}, -v{vm+n}, v{cu+i}, v{U+i}")
                p(f"v_max_f32 v{G+i}, 0, v{G+i}")
                p(f"v_mul_f32 v{G+i}, v{G+i}, v{U+i}")
            o = t + 8*n + 4*j
            for m in range(4):
                p(f"v_cvt_pk_bf16_f32 v{o+m}, v{G+8*j+2*m}, v{G+8*j+2*m+1}")
            p(f"s_add_u32 s{s_off}, s{s_h0+n}, {4096*pas}")
            p(f"buffer_store_dwordx4 v[{o}:{o+3}], v2, s[{sWS}:{sWS+3}], s{s_off} offen offset:{1024*j} sc1")

def g1_stats(p):
    t = 96
    for sp in range(2):
        for j in range(4):
            p(f"v_accvgpr_read_b32 v{t+4*sp+j}, a{XF(sp, 0)+j}")
    s, q = t + 8, t + 9
    for k in range(8):
        p(f"v_lshlrev_b32 v{t+10}, 16, v{t+k}")
        p(f"v_and_b32 v{t+11}, 0xffff0000, v{t+k}")
        if k == 0:
            p(f"v_add_f32 v{s}, v{t+10}, v{t+11}")
            p(f"v_mul_f32 v{q}, v{t+10}, v{t+10}")
        else:
            p(f"v_add_f32 v{s}, v{s}, v{t+10}")
            p(f"v_fmac_f32 v{q}, v{t+10}, v{t+10}")
            p(f"v_add_f32 v{s}, v{s}, v{t+11}")
        p(f"v_fmac_f32 v{q}, v{t+11}, v{t+11}")
    p(f"v_permlane32_swap_b32 v{s}, v{q}")
    p(f"v_add_f32 v{s}, v{s}, v{q}")
    p("v_lshrrev_b32 v4, 5, v1")
    p("v_lshlrev_b32 v4, 9, v4")
    p("v_and_b32 v5, 31, v1")
    p("v_lshl_add_u32 v4, v5, 2, v4")
    p(f"s_mul_i32 s{s_t0}, s{s_rbk}, 14")
    p(f"s_add_u32 s{s_t0}, s{s_t0}, s{s_fs}")
    p(f"s_lshl_b32 s{s_t0}, s{s_t0}, 10")
    p(f"s_lshl_b32 s{s_t1}, s{s_wt}, 8")
    p(f"s_add_u32 s{s_t0}, s{s_t0}, s{s_t1}")
    p(f"s_lshl_b32 s{s_t1}, s{s_wf}, 7")
    p(f"s_add_u32 s{s_t0}, s{s_t0}, s{s_t1}")
    p(f"s_add_u32 s{s_off}, s{s_t0}, {WS_ST}")
    p(f"buffer_store_dword v{s}, v4, s[{sWS}:{sWS+3}], s{s_off} offen sc1")

def gemm1(p):
    g1_setup(p)
    for c in range(4):
        dma_x(p, c, c, f"x{c}"); dma_w(p, 0, c, WSLOT(c), f"w0{c}")
    for c in range(7):
        p.wait(f"x{c}", f"w0{c}", 'czero')
        p("s_barrier")
        if c >= 1:
            pc = c - 1
            if pc + 4 <= 6:
                dma_x(p, pc + 4, pc % 4, f"x{pc+4}"); dma_w(p, 0, pc + 4, WSLOT(pc % 4), f"w0{pc+4}")
            else:
                k = 2*(pc - 3)
                for kk in (k, k + 1):
                    if kk <= 6: dma_w(p, 1, kk, P2SLOT[kk], f"w1{kk}")
        for sp in range(4):
            g1_step(p, 0, c, sp, WSLOT(c % 4), c % 4, 0)
        p("s_waitcnt lgkmcnt(0)")
    stamp(p, 2)
    g1_stats(p)
    g1_select_out(p, 0)
    for c in range(7):
        p.wait(f"w1{c}", 'sel')
        p("s_barrier")
        if c == 0:
            dma_w(p, 1, 6, P2SLOT[6], "w16")
            g1_epilogue(p, 0, 0)
        for sp in range(4):
            g1_step(p, 1, c, sp, P2SLOT[c], None, 1)
        p("s_waitcnt lgkmcnt(0)")
        if c == 0:
            p(f"s_lshl_b32 s{s_t0}, s{s_rbk}, 9")
            p(f"s_lshl_b32 s{s_t1}, s{s_fs}, 2")
            p(f"s_add_u32 s{s_t0}, s{s_t0}, s{s_t1}")
            p(f"s_add_u32 s{s_t3}, s{s_t0}, {WS_F1}")
            post_flag(p, s_t3, "h0")
    stamp(p, 3)
    g1_select_out(p, 1)
    p.wait('sel')
    p("s_barrier")
    g1_epilogue(p, 1, 1)
    p(f"s_lshl_b32 s{s_t0}, s{s_rbk}, 9")
    p(f"s_lshl_b32 s{s_t1}, s{s_fs}, 2")
    p(f"s_add_u32 s{s_t0}, s{s_t0}, s{s_t1}")
    p(f"s_add_u32 s{s_t3}, s{s_t0}, {WS_F1 + 256}")
    post_flag(p, s_t3, "h1")

def conv(p):
    p(f"s_lshr_b32 s{s_t0}, s2, 5")
    p(f"s_lshl_b32 s{s_t0}, s{s_t0}, 8")
    p(f"s_add_u32 s{s_t3}, s{s_t0}, {WS_F0}")
    wait_flags(p, s_t3, 32, "kv")
    T = 192
    p(f"s_lshl_b32 s{s_t0}, s2, 1")
    p(f"s_add_u32 s{s_t0}, s{s_t0}, s{s_wf}")
    p(f"s_lshl_b32 s{s_t1}, s{s_t0}, 12")
    p(f"s_lshl_b32 s{s_t2}, s{s_wt}, 11")
    p(f"s_add_u32 s{s_t2}, s{s_t2}, s{s_t1}")
    p(f"s_add_u32 s{s_off}, s{s_t2}, {WS_KVR}")
    for j in range(2):
        p(f"buffer_load_dwordx4 v[{T+4*j}:{T+4*j+3}], v2, s[{sWS}:{sWS+3}], s{s_off} offen offset:{1024*j} sc1")
    p(f"s_add_u32 s{s_off+1}, s{s_t2}, 0")
    for jj in range(2):
        for k in range(3):
            r = T + 8 + 12*jj + 4*k
            p(f"buffer_load_dwordx4 v[{r}:{r+3}], v2, s[{sSSM}:{sSSM+3}], s{s_off+1} offen offset:{1024*jj + 4*k}")
    p("v_mov_b32 v4, 0")
    p(f"buffer_load_dwordx2 v[{T+32}:{T+33}], v4, s[{sSSM}:{sSSM+3}], s{s_t1} offen")
    p(f"s_lshl_b32 s{s_t0}, s{s_t0}, 1")
    p(f"buffer_load_ushort v15, v4, s[{sSD}:{sSD+3}], s{s_t0} offen")
    p(f"s_mul_i32 s{s_t0}, s{s_wf}, {XRSTR}")
    p(f"s_lshl_b32 s{s_t2}, s{s_wt}, 11")
    p(f"s_add_u32 s{s_t0}, s{s_t0}, s{s_t2}")
    p(f"s_add_u32 s{s_t0}, s{s_t0}, {L_XR}")
    p(f"v_add_u32 v5, s{s_t0}, v2")
    for j in range(2):
        p(f"ds_write_b128 v5, v[{T+4*j}:{T+4*j+3}] offset:{1024*j}", tok='cv')
    for j in range(4): p(f"v_mov_b32 v{8+j}, 0")
    p(f"s_mul_i32 s{s_t0}, s{s_wf}, {XRSTR}")
    p(f"s_add_u32 s{s_t0}, s{s_t0}, {L_XR + 4096}")
    p("v_and_b32 v6, 31, v1")
    p("v_lshlrev_b32 v6, 4, v6")
    p(f"v_add_u32 v6, s{s_t0}, v6")
    p("ds_write_b128 v6, v[8:11]", tok='cv')
    p(f"s_mul_i32 s{s_t0}, s{s_wf}, {HCH}")
    p(f"s_lshl_b32 s{s_t2}, s{s_wt}, 11")
    p(f"s_add_u32 s{s_t0}, s{s_t0}, s{s_t2}")
    p(f"s_add_u32 s{s_t0}, s{s_t0}, {L_H + 32}")
    p(f"v_add_u32 v5, s{s_t0}, v2")
    tt = T + 36
    for jj in range(2):
        L0, L1, L2 = T + 8 + 12*jj, T + 12 + 12*jj, T + 16 + 12*jj
        p(f"ds_write_b128 v5, v[{L0}:{L0+3}] offset:{1024*jj}", tok='cv')
        for k in range(4):
            p(f"v_alignbit_b32 v{tt+k}, v{L1+k}, v{L0+k}, 16")
        p(f"ds_write_b128 v5, v[{tt}:{tt+3}] offset:{1024*jj + HSTR}", tok='cv')
        p(f"ds_write_b128 v5, v[{L1}:{L1+3}] offset:{1024*jj + 2*HSTR}", tok='cv')
        for k in range(4):
            p(f"v_alignbit_b32 v{tt+4+k}, v{L2+k}, v{L1+k}, 16")
        p(f"ds_write_b128 v5, v[{tt+4}:{tt+7}] offset:{1024*jj + 3*HSTR}", tok='cv')
    h0, h1 = T + 32, T + 33
    p("v_bfe_u32 v6, v1, 3, 2")
    p("v_and_b32 v7, 7, v1")
    p("v_mov_b32 v8, 0")
    p(f"v_lshlrev_b32 v9, 16, v{h0}")
    p(f"v_alignbit_b32 v10, v{h1}, v{h0}, 16")
    p("v_lshl_add_u32 v11, v6, 3, v7")
    for val, src in ((15, 9), (23, "h0"), (31, 10), (30, 9)):
        p(f"v_cmp_eq_u32 vcc, {val}, v11")
        p(f"v_cndmask_b32 v8, v8, v{h0 if src == 'h0' else src}, vcc")
    p(f"v_mul_u32_u24 v6, {HSTR}, v6")
    p("v_lshl_add_u32 v6, v7, 2, v6")
    p(f"s_mul_i32 s{s_t0}, s{s_wf}, {HCH}")
    p(f"s_add_u32 s{s_t0}, s{s_t0}, {L_H}")
    p(f"v_add_u32 v6, s{s_t0}, v6")
    p("ds_write_b32 v6, v8", tok='cv')
    vB, vA = 16, 17
    p("v_and_b32 v4, 15, v1")
    p("v_lshrrev_b32 v5, 4, v1")
    p("v_lshlrev_b32 v6, 5, v4")
    p("v_lshlrev_b32 v7, 4, v5")
    p("v_sub_u32 v7, v7, v6")
    p(f"s_mul_i32 s{s_t0}, s{s_wf}, {XRSTR}")
    p(f"s_lshl_b32 s{s_t2}, s{s_wt}, 8")
    p(f"s_add_u32 s{s_t0}, s{s_t0}, s{s_t2}")
    p(f"s_add_u32 s{s_t0}, s{s_t0}, {L_XR + 4064 - 3584}")
    p(f"v_add_u32 v{vB}, s{s_t0}, v7")
    p("v_add_u32 v6, 1, v4")
    p("v_and_b32 v7, 3, v6")
    p("v_sub_u32 v6, v6, v7")
    p("v_lshlrev_b32 v6, 1, v6")
    p(f"v_mul_u32_u24 v7, {HSTR}, v7")
    p("v_add_u32 v6, v6, v7")
    p("v_lshl_add_u32 v6, v5, 4, v6")
    p(f"s_mul_i32 s{s_t0}, s{s_wf}, {HCH}")
    p(f"s_add_u32 s{s_t0}, s{s_t0}, s{s_t2}")
    p(f"s_add_u32 s{s_t0}, s{s_t0}, {L_H}")
    p(f"v_add_u32 v{vA}, s{s_t0}, v6")
    p.wait('cv')
    p("s_barrier")
    stamp(p, 5)
    acc = lambda t: 128 + 4*t
    BF = lambda s: 160 + 4*s
    AFc = lambda k: 192 + 4*k
    for t in range(8):
        for j in range(4): p(f"v_mov_b32 v{acc(t)+j}, 0")
    for rho in range(4):
        for s in range(8):
            p(f"ds_read_b128 v[{BF(s)}:{BF(s)+3}], v{vB} offset:{64*rho + 512*(7-s)}")
        for i in range(7, -1, -1):
            a = AFc(i % 4)
            p(f"ds_read_b64 v[{a}:{a+1}], v{vA} offset:{64*rho + 512*i}")
            p(f"ds_read_b64 v[{a+2}:{a+3}], v{vA} offset:{64*rho + 512*i + 8}")
            for t in range(i, 8):
                p(f"v_mfma_f32_16x16x32_bf16 v[{acc(t)}:{acc(t)+3}], v[{a}:{a+3}], v[{BF(t-i)}:{BF(t-i)+3}], v[{acc(t)}:{acc(t)+3}]")
    stamp(p, 6)
    p("s_waitcnt lgkmcnt(0)")
    p("s_barrier")
    p(f"s_xor_b32 s{s_t0}, s{s_w}, 1")
    p(f"s_lshl_b32 s{s_t0}, s{s_t0}, 12")
    p(f"v_add_u32 v4, s{s_t0}, v2")
    p(f"v_add_u32 v5, s{s_w4k}, v2")
    p("s_nop 7")
    p(f"s_cmp_eq_u32 s{s_wt}, 0")
    p("s_cbranch_scc1 L_cv_lo")
    for k in range(4):
        p.raw(f"ds_write_b128 v4, v[{acc(k)}:{acc(k)+3}] offset:{1024*k}")
    for k in range(16):
        p.raw(f"v_mov_b32 v{160+k}, v{acc(4)+k}")
    p.raw("s_branch L_cv_join")
    p("L_cv_lo:")
    for k in range(4):
        p.raw(f"ds_write_b128 v4, v[{acc(4+k)}:{acc(4+k)+3}] offset:{1024*k}")
    for k in range(16):
        p.raw(f"v_mov_b32 v{160+k}, v{acc(0)+k}")
    p("L_cv_join:")
    p("s_waitcnt lgkmcnt(0)")
    p("s_barrier")
    for k in range(4):
        p(f"ds_read_b128 v[{176+4*k}:{176+4*k+3}], v5 offset:{1024*k}")
    p("v_and_b32 v6, 15, v1")
    p("v_lshrrev_b32 v7, 4, v1")
    p("v_lshlrev_b32 v6, 5, v6")
    p("v_lshl_add_u32 v6, v7, 3, v6")
    p(f"s_mul_i32 s{s_t0}, s{s_wf}, {XRSTR}")
    p(f"s_lshl_b32 s{s_t2}, s{s_wt}, 11")
    p(f"s_sub_u32 s{s_t0}, s{s_t0}, s{s_t2}")
    p(f"s_add_u32 s{s_t0}, s{s_t0}, {L_XR + 2*2044 - 3*512}")
    p(f"v_sub_u32 v7, s{s_t0}, v6")
    for k in range(4):
        p(f"ds_read_b64 v[{192+2*k}:{192+2*k+1}], v7 offset:{512*(3-k)}")
    p("v_lshlrev_b32 v15, 16, v15")
    for k in range(4):
        for r in range(4):
            p(f"v_add_f32 v{160+4*k+r}, v{160+4*k+r}, v{176+4*k+r}")
        a, b = 192 + 2*k, 192 + 2*k + 1
        p(f"v_and_b32 v8, 0xffff0000, v{b}")
        p(f"v_lshlrev_b32 v9, 16, v{b}")
        p(f"v_and_b32 v10, 0xffff0000, v{a}")
        p(f"v_lshlrev_b32 v11, 16, v{a}")
        for r in range(4):
            p(f"v_fmac_f32 v{160+4*k+r}, v15, v{8+r}")
        p(f"v_cvt_pk_bf16_f32 v{200+2*k}, v{160+4*k}, v{160+4*k+1}")
        p(f"v_cvt_pk_bf16_f32 v{200+2*k+1}, v{160+4*k+2}, v{160+4*k+3}")
    p(f"s_lshl_b32 s{s_t0}, s2, 1")
    p(f"s_add_u32 s{s_t0}, s{s_t0}, s{s_wf}")
    p(f"s_lshl_b32 s{s_t0}, s{s_t0}, 12")
    p(f"s_lshl_b32 s{s_t2}, s{s_wt}, 11")
    p(f"s_add_u32 s{s_t0}, s{s_t0}, s{s_t2}")
    p(f"s_add_u32 s{s_off}, s{s_t0}, {WS_YT}")
    for k in range(4):
        p(f"buffer_store_dwordx2 v[{200+2*k}:{200+2*k+1}], v6, s[{sWS}:{sWS+3}], s{s_off} offen offset:{512*k} sc1")
    p(f"s_lshr_b32 s{s_t0}, s2, 5")
    p(f"s_lshl_b32 s{s_t0}, s{s_t0}, 8")
    p(f"s_and_b32 s{s_t1}, s2, 31")
    p(f"s_lshl_b32 s{s_t1}, s{s_t1}, 2")
    p(f"s_add_u32 s{s_t0}, s{s_t0}, s{s_t1}")
    p(f"s_add_u32 s{s_t3}, s{s_t0}, {WS_F2}")
    post_flag(p, s_t3, "y")

vWDD, vWR, vHL = 16, 20, 24
def gemm2_setup(p):
    p("v_lshrrev_b32 v4, 3, v1")
    p("v_and_b32 v5, 7, v1")
    p("v_bfe_u32 v6, v1, 4, 1")
    p("v_lshlrev_b32 v6, 2, v6")
    p("v_xor_b32 v6, v5, v6")
    p("v_lshlrev_b32 v6, 4, v6")
    p(f"s_lshl_b32 s{s_t0}, s{s_wf}, 2")
    p(f"s_add_u32 s{s_t0}, s{s_t0}, s{s_wt}")
    p(f"s_lshl_b32 s{s_t0}, s{s_t0}, 5")
    p(f"v_add_u32 v4, s{s_t0}, v4")
    p("v_mul_u32_u24 v4, 896, v4")
    p(f"s_lshl_b32 s{s_t1}, s{s_cb}, 7")
    p(f"v_add3_u32 v{vWDD}, v4, v6, s{s_t1}")
    for j in range(1, 4):
        p(f"v_add_u32 v{vWDD+j}, {6144*j}, v{vWDD}")
    p("v_and_b32 v4, 3, v1")
    p("v_bfe_u32 v5, v1, 2, 2")
    p("v_bfe_u32 v6, v1, 4, 1")
    p("v_lshrrev_b32 v7, 5, v1")
    p("v_lshrrev_b32 v8, 1, v5")
    p("v_lshlrev_b32 v8, 6, v8")
    p("v_lshl_add_u32 v8, v6, 5, v8")
    p("v_lshl_add_u32 v8, v4, 3, v8")
    p("v_lshl_add_u32 v8, v5, 7, v8")
    p("v_lshl_add_u32 v8, v7, 9, v8")
    p(f"s_add_u32 s{s_t0}, s{s_w4k}, {L_WD}")
    p(f"v_add_u32 v{vWR}, s{s_t0}, v8")
    p(f"v_xor_b32 v{vWR+1}, 64, v{vWR}")
    p(f"v_add_u32 v{vWR+2}, 65536, v{vWR}")
    p(f"v_add_u32 v{vWR+3}, 65536, v{vWR+1}")
    p(f"s_lshl_b32 s{s_t0}, s{s_wf}, 2")
    p(f"s_add_u32 s{s_t0}, s{s_t0}, s{s_wt}")
    p(f"s_mul_i32 s{s_t1}, s{s_rb}, 112")
    p(f"s_add_u32 s{s_t0}, s{s_t0}, s{s_t1}")
    p(f"s_lshl_b32 s{s_t0}, s{s_t0}, 11")
    p(f"s_add_u32 s{s_h0}, s{s_t0}, {WS_H}")
    p(f"s_add_u32 s{s_h1}, s{s_h0}, {56*2048}")

def dma_wd(p, pas, a, tok):
    p(f"s_add_u32 m0, s{s_w4k}, {L_WD + 16384*a}")
    p(f"s_mov_b32 s{s_off}, {229376*a + 57344*pas}")
    for j in range(4):
        p(f"buffer_load_dwordx4 v{vWDD+j}, s[{sWD}:{sWD+3}], s{s_off} offen offset:{1024*j} lds", tok=tok)

def wd_reads(p, a, j, dst):
    f, base = dst
    for dt in range(2):
        for u in range(2):
            r = base + 4*dt + 2*u
            reg = vWR + dt + (2 if a >= 4 else 0)
            o = 16384*(a - 4 if a >= 4 else a) + 2048*j + 1024*u
            p(f"ds_read_b64_tr_b16 {f}[{r}:{r+1}], v{reg} offset:{o}")

def gemm2(p):
    gemm2_setup(p)
    ACC2 = lambda dt, n: 128 + 32*dt + 16*n
    for pas in range(2):
        for a in range(7): dma_wd(p, pas, a, f"wd{pas}{a}")
        p(f"s_lshr_b32 s{s_t0}, s{s_rb}, 1")
        p(f"s_lshl_b32 s{s_t0}, s{s_t0}, 9")
        p(f"s_add_u32 s{s_t3}, s{s_t0}, {WS_F1 + 256*pas}")
        wait_flags(p, s_t3, 14, f"h{pas}")
        p.wait(f"wd{pas}6")
        for a in range(7):
            for j in range(2):
                for n in range(2):
                    r = 8*(2*a + j) + 4*n
                    p(f"s_add_u32 s{s_off}, s{s_h0+n}, {(8*a + 2*pas)*2048}")
                    p(f"buffer_load_dwordx4 a[{r}:{r+3}], v2, s[{sWS}:{sWS+3}], s{s_off} offen offset:{1024*j} sc1")
        for a in range(7):
            for j in range(2):
                wd_reads(p, a, j, ('v', 192 + 8*j))
                for dt in range(2):
                    for n in range(2):
                        d = ACC2(dt, n); A = 192 + 8*j + 4*dt; B = 8*(2*a + j) + 4*n
                        first = (pas == 0 and a == 0 and j == 0)
                        p(f"v_mfma_f32_32x32x16_bf16 v[{d}:{d+15}], v[{A}:{A+3}], a[{B}:{B+3}], " + ("0" if first else f"v[{d}:{d+15}]"))
        p("s_waitcnt lgkmcnt(0)")
    stamp(p, 8)

def final(p):
    ACC2 = lambda dt, n: 128 + 32*dt + 16*n
    p("s_barrier")
    p("s_nop 7")
    p("s_nop 7")
    for wv in range(4):
        L = f"L_red_{wv}"
        p(f"s_cmp_lg_u32 s{s_w}, {wv}")
        p(f"s_cbranch_scc1 {L}")
        for k in range(4):
            if k == wv: continue
            slot = (wv - k - 1) % 4
            base = L_RED + (k*3 + slot)*4096
            for g in range(4):
                r = 128 + 16*k + 4*g
                p.raw(f"ds_write_b128 v2, v[{r}:{r+3}] offset:{base + 1024*g}")
        for i in range(16):
            p.raw(f"v_mov_b32 v{192+i}, v{128+16*wv+i}")
        p(f"{L}:")
    p(f"s_lshl_b32 s{s_t0}, s{s_cb}, 8")
    p(f"s_add_u32 s{s_t3}, s{s_t0}, {WS_F2}")
    wait_flags(p, s_t3, 32, "yt")
    p("v_lshrrev_b32 v4, 3, v1")
    p("v_and_b32 v5, 7, v1")
    p("v_xor_b32 v6, v5, v4")
    p("v_lshlrev_b32 v6, 4, v6")
    p(f"s_lshl_b32 s{s_t0}, s{s_rb}, 6")
    p(f"s_lshl_b32 s{s_t1}, s{s_w}, 4")
    p(f"s_add_u32 s{s_t0}, s{s_t0}, s{s_t1}")
    p(f"v_add_u32 v7, s{s_t0}, v4")
    p("v_mul_u32_u24 v7, 896, v7")
    p(f"s_lshl_b32 s{s_t1}, s{s_cb}, 7")
    p(f"v_add3_u32 v7, v7, v6, s{s_t1}")
    p("v_add_u32 v8, 6144, v7")
    p(f"s_lshl_b32 s{s_t0}, s{s_w}, 11")
    p(f"s_add_u32 m0, s{s_t0}, {L_QT}")
    p(f"buffer_load_dwordx4 v7, s[{sQ}:{sQ+3}], 0 offen lds", tok='qt')
    p(f"buffer_load_dwordx4 v8, s[{sQ}:{sQ+3}], 0 offen offset:1024 lds", tok='qt')
    p(f"s_lshl_b32 s{s_t0}, s{s_cb}, 6")
    p(f"s_lshl_b32 s{s_t1}, s{s_w}, 4")
    p(f"s_add_u32 s{s_t0}, s{s_t0}, s{s_t1}")
    p(f"v_add_u32 v9, s{s_t0}, v4")
    p("v_lshlrev_b32 v9, 12, v9")
    p("v_lshl_add_u32 v9, v5, 4, v9")
    p(f"s_lshl_b32 s{s_t1}, s{s_rb}, 7")
    p(f"s_add_u32 s{s_off}, s{s_t1}, {WS_YT}")
    p(f"s_add_u32 s{s_off+1}, s{s_off}, {8*4096}")
    p(f"buffer_load_dwordx4 v[208:211], v9, s[{sWS}:{sWS+3}], s{s_off} offen sc1")
    p(f"buffer_load_dwordx4 v[212:215], v9, s[{sWS}:{sWS+3}], s{s_off+1} offen sc1")
    p("v_lshrrev_b32 v10, 5, v1")
    p("v_lshlrev_b32 v10, 9, v10")
    p("v_and_b32 v11, 31, v1")
    p("v_lshl_add_u32 v10, v11, 2, v10")
    p(f"s_lshr_b32 s{s_t0}, s{s_rb}, 1")
    p(f"s_mul_i32 s{s_t0}, s{s_t0}, {14*1024}")
    p(f"s_and_b32 s{s_t1}, s{s_rb}, 1")
    p(f"s_lshl_b32 s{s_t1}, s{s_t1}, 8")
    p(f"s_add_u32 s{s_t0}, s{s_t0}, s{s_t1}")
    p(f"s_lshl_b32 s{s_t1}, s{s_wt}, 7")
    p(f"s_add_u32 s{s_t0}, s{s_t0}, s{s_t1}")
    p(f"s_add_u32 s{s_off+1}, s{s_t0}, {WS_ST}")
    for fs in range(14):
        p(f"s_add_u32 s{s_t2}, s{s_off+1}, {1024*fs}")
        p(f"buffer_load_dword v{216+fs}, v10, s[{sWS}:{sWS+3}], s{s_t2} offen sc1")
    p("v_bfe_u32 v11, v1, 4, 1")
    p("v_lshlrev_b32 v11, 2, v11")
    p("v_xor_b32 v11, v5, v11")
    p("v_lshlrev_b32 v11, 4, v11")
    p("v_lshl_add_u32 v11, v4, 7, v11")
    p(f"s_lshl_b32 s{s_t0}, s{s_w}, 11")
    p(f"s_add_u32 s{s_t0}, s{s_t0}, {L_YT}")
    p(f"v_add_u32 v11, s{s_t0}, v11")
    p("ds_write_b128 v11, v[208:211]", tok='fin')
    p("ds_write_b128 v11, v[212:215] offset:1024", tok='fin')
    p("s_waitcnt lgkmcnt(0)")
    p.wait('qt')
    p("s_barrier")
    p(f"s_mul_i32 s{s_t0}, s{s_w}, {3*4096}")
    p(f"v_add_u32 v12, s{s_t0}, v2")
    for slot in range(3):
        for g in range(4):
            r = 128 + 16*slot + 4*g
            p(f"ds_read_b128 v[{r}:{r+3}], v12 offset:{L_RED + 4096*slot + 1024*g}")
    for slot in range(3):
        for i in range(16):
            p(f"v_add_f32 v{192+i}, v{192+i}, v{128+16*slot+i}")
    for fs in range(1, 14):
        p(f"v_add_f32 v216, v216, v{216+fs}")
    p("v_mov_b32 v217, v216")
    p("v_permlane32_swap_b32 v216, v217")
    p(f"s_mov_b32 s{s_t0}, 0x3b124925")
    p(f"v_mul_f32 v216, s{s_t0}, v216")
    p(f"v_mul_f32 v217, s{s_t0}, v217")
    p("v_fma_f32 v217, -v216, v216, v217")
    p("v_max_f32 v217, 0, v217")
    p("v_cvt_pk_bf16_f32 v218, v216, v217")
    p("v_lshlrev_b32 v216, 16, v218")
    p("v_and_b32 v217, 0xffff0000, v218")
    p("v_add_f32 v217, 0x3727c5ac, v217")
    p("v_cvt_pk_bf16_f32 v217, v217, v217")
    p("v_lshlrev_b32 v217, 16, v217")
    p("v_sqrt_f32 v217, v217")
    p("v_cvt_pk_bf16_f32 v217, v217, v217")
    p("v_lshlrev_b32 v217, 16, v217")
    p("v_rcp_f32 v217, v217")
    p("v_mul_f32 v218, v217, v217")
    p("v_and_b32 v4, 31, v1")
    p("v_lshrrev_b32 v5, 5, v1")
    p(f"s_lshl_b32 s{s_t0}, s{s_wt}, 5")
    p(f"v_add_u32 v6, s{s_t0}, v4")
    p("v_and_b32 v9, 7, v4")
    p(f"s_lshl_b32 s{s_t1}, s{s_wf}, 2")
    p(f"v_xor_b32 v9, s{s_t1}, v9")
    p("v_lshlrev_b32 v9, 4, v9")
    p("v_lshl_add_u32 v9, v6, 7, v9")
    p("v_lshl_add_u32 v9, v5, 3, v9")
    for g in range(4):
        p(f"v_xor_b32 v10, {16*g}, v9")
        p(f"ds_read_b64 v[{128+2*g}:{128+2*g+1}], v10 offset:{L_QT}")
        p(f"v_add_u32 v{224+g}, {L_OT}, v10")
    p("v_and_b32 v4, 3, v1")
    p("v_bfe_u32 v5, v1, 2, 2")
    p("v_bfe_u32 v6, v1, 4, 1")
    p("v_lshrrev_b32 v10, 5, v1")
    p("v_lshrrev_b32 v11, 1, v5")
    p(f"v_xor_b32 v11, s{s_wt}, v11")
    p("v_lshlrev_b32 v11, 6, v11")
    p("v_lshl_add_u32 v11, v6, 5, v11")
    p("v_lshl_add_u32 v11, v4, 3, v11")
    p("v_lshl_add_u32 v11, v5, 7, v11")
    p("v_lshl_add_u32 v11, v10, 9, v11")
    p(f"s_lshl_b32 s{s_t0}, s{s_wf}, 12")
    p(f"s_add_u32 s{s_t0}, s{s_t0}, {L_YT}")
    p(f"v_add_u32 v11, s{s_t0}, v11")
    for g in range(4):
        p(f"ds_read_b64_tr_b16 v[{136+2*g}:{136+2*g+1}], v11 offset:{1024*g}")
    for g in range(4):
        for r in range(4):
            i = 4*g + r
            xq = 128 + 2*g + (r >> 1); yq = 136 + 2*g + (r >> 1)
            if r & 1:
                p(f"v_and_b32 v144, 0xffff0000, v{xq}"); p(f"v_and_b32 v145, 0xffff0000, v{yq}")
            else:
                p(f"v_lshlrev_b32 v144, 16, v{xq}"); p(f"v_lshlrev_b32 v145, 16, v{yq}")
            p("v_sub_f32 v146, v144, v216")
            p("v_mul_f32 v146, v146, v217")
            p("v_fmac_f32 v144, v146, v145")
            p(f"v_fmac_f32 v144, v218, v{192+i}")
            p(f"v_mov_b32 v{148+r}, v144")
        p(f"v_cvt_pk_bf16_f32 v{152+2*g}, v148, v149")
        p(f"v_cvt_pk_bf16_f32 v{152+2*g+1}, v150, v151")
        p(f"ds_write_b64 v{224+g}, v[{152+2*g}:{152+2*g+1}]", tok='ot')
    p.wait('ot')
    p("s_barrier")
    p(f"s_lshl_b32 s{s_t0}, s{s_w}, 11")
    p(f"s_add_u32 s{s_t0}, s{s_t0}, {L_OT}")
    p(f"v_add_u32 v4, s{s_t0}, v2")
    p("ds_read_b128 v[160:163], v4")
    p("ds_read_b128 v[164:167], v4 offset:1024")
    p("v_add_u32 v8, 1024, v8")
    p(f"buffer_store_dwordx4 v[160:163], v7, s[{sOUT}:{sOUT+3}], 0 offen")
    p(f"buffer_store_dwordx4 v[164:167], v8, s[{sOUT}:{sOUT+3}], 0 offen")

def build(stamps=False, stop_after=None):
    global STAMPS
    STAMPS = stamps
    p = Prog()
    prologue(p)
    stamp(p, 0)
    phase0(p)
    get_nonce(p, "a")
    p(f"s_lshl_b32 s{s_t0}, s{s_cb}, 8")
    p(f"s_lshl_b32 s{s_t1}, s{s_rb}, 2")
    p(f"s_add_u32 s{s_t0}, s{s_t0}, s{s_t1}")
    p(f"s_add_u32 s{s_t3}, s{s_t0}, {WS_F0}")
    post_flag(p, s_t3, "kv")
    stamp(p, 1)
    gemm1(p)
    stamp(p, 4)
    conv(p)
    stamp(p, 7)
    gemm2(p)
    final(p)
    p("s_waitcnt vmcnt(0)")
    stamp(p, 9)
    p("L_end:")
    p("s_endpgm")
    return p

HEADER_COMMENT = open("parallel_sum__ssm_conv_h3__glu_gated_reglu__prompt.s.ref").read().split("; Override launch")[0]

def emit(p, path):
    hdr = f'.amdgcn_target "amdgcn-amd-amdhsa--gfx950"\n.text\n.globl {KNAME}\n.p2align 8\n.type {KNAME},@function\n{KNAME}:\n'
    ins = finalize(p, hdr, "tmp_sz")
    body = '\n'.join(('    ' + i.text) if is_code(i) else i.text for i in ins if i.kind != 'pwait')
    txt = HEADER_COMMENT
    txt += f"; @launch grid=({NWG},1,1) block=(256,1,1) lds={LDS_BYTES}\n"
    txt += hdr + body + "\n"
    txt += f""".section .rodata,"a"
.p2align 6
.amdhsa_kernel {KNAME}
  .amdhsa_next_free_vgpr 512
  .amdhsa_next_free_sgpr 102
  .amdhsa_accum_offset 256
  .amdhsa_group_segment_fixed_size 0
  .amdhsa_kernarg_size 104
  .amdhsa_user_sgpr_count 2
  .amdhsa_user_sgpr_kernarg_segment_ptr 1
  .amdhsa_system_sgpr_workgroup_id_x 1
.end_amdhsa_kernel
"""
    open(path, "w").write(txt)

if __name__ == "__main__":
    out = sys.argv[1]
    stamps = len(sys.argv) > 2 and sys.argv[2] == "stamps"
    emit(build(stamps), out)
```

```python
import sys
from fw import *

KNAME = "parallel_sum__ssm_conv_h3__glu_gated_reglu__prompt_kernel"
NWG = 224
S, D, F = 2048, 448, 1792

WS_FLAG = 0x0
WS_F0, WS_F1, WS_F2 = 0x0, 0x1000, 0x4000
WS_STAMP = 0x10000
WS_KVR = 0x100000
WS_YT = 0x300000
WS_ST = 0x500000
WS_H = 0x600000
WS_BYTES = 0x1000000

XSLOT = lambda k: 16384 * k
WSLOT = lambda k: 65536 + 16384 * k
L_MISC = 147456
L_KT = L_MISC
L_M = L_MISC + 8192
L_C = L_M + 512
L_H = 0; HSTR = 4160; HCH = 4 * HSTR
L_XR = 2 * HCH; XRSTR = 4608
L_WD = 49152
L_RED = 0
L_QT = 49152; L_YT = L_QT + 8192; L_OT = L_YT + 8192
LDS_BYTES = 163840

sQ, sK, sV, sSK, sSSM, sWG, sWW, sWD, sOUT, sWS, sDBG, sSD = 4, 8, 12, 16, 20, 24, 28, 32, 36, 40, 44, 48
P = 52
s_w, s_wt, s_wf, s_x, s_i = 78, 79, 80, 81, 82
s_rbk, s_fs, s_rb, s_cb = 83, 84, 85, 86
s_nonce = 87
s_t0, s_t1, s_t2, s_t3 = 88, 89, 90, 91
s_w4k = 92
s_c = 52
s_cw = 59
s_h0, s_h1 = 66, 67
s_off = 68
s_sv = 70
s_cnt = 72
s_ta, s_tb = 74, 76
s_T = 94

def srd(p, r, ptr, nbytes):
    p(f"s_mov_b32 s{r}, s{ptr}")
    p(f"s_and_b32 s{r+1}, s{ptr+1}, 0xffff")
    p(f"s_mov_b32 s{r+2}, {nbytes}")
    p(f"s_mov_b32 s{r+3}, 0x20000")

STAMPS = False
def stamp(p, k):
    if not STAMPS: return
    L = f"L_stamp_{k}"
    p.raw(f"s_cmp_lg_u32 s{s_w}, 0")
    p.raw(f"s_cbranch_scc1 {L}")
    p.raw(f"s_memrealtime s[{s_T}:{s_T+1}]")
    p.raw(f"s_lshl_b32 s96, s2, 7")
    p.raw(f"s_add_u32 s96, s96, {WS_STAMP + 8*k}")
    p.raw("s_waitcnt lgkmcnt(0)")
    p.raw(f"v_mov_b32 v12, s{s_T}")
    p.raw(f"v_mov_b32 v13, s{s_T+1}")
    p.raw(f"v_mov_b32 v14, 0")
    p.raw(f"s_mov_b64 s[98:99], exec")
    p.raw(f"s_mov_b64 exec, 1")
    p.raw(f"buffer_store_dwordx2 v[12:13], v14, s[{sWS}:{sWS+3}], s96 offen")
    p.raw(f"s_mov_b64 exec, s[98:99]")
    p.raw(f"{L}:")
    i = Ins("s_nop 0"); p.ins.append(i)

def prologue(p):
    p(f"s_cmp_ge_u32 s2, {NWG}")
    p("s_cbranch_scc1 L_end")
    p(f"s_load_dwordx16 s[{P}:{P+15}], s[0:1], 0")
    p(f"s_load_dwordx8 s[{P+16}:{P+23}], s[0:1], 64")
    p(f"s_load_dwordx2 s[{P+24}:{P+25}], s[0:1], 96")
    p("v_lshrrev_b32 v3, 6, v0")
    p("v_and_b32 v1, 63, v0")
    p(f"v_readfirstlane_b32 s{s_w}, v3")
    p("v_lshlrev_b32 v2, 4, v1")
    p(f"s_and_b32 s{s_x}, s2, 7")
    p(f"s_lshr_b32 s{s_i}, s2, 3")
    p(f"s_mul_i32 s{s_t0}, s{s_i}, 37")
    p(f"s_lshr_b32 s{s_t0}, s{s_t0}, 8")
    p(f"s_mul_i32 s{s_t1}, s{s_t0}, 7")
    p(f"s_sub_u32 s{s_cb}, s{s_i}, s{s_t1}")
    p(f"s_lshl_b32 s{s_rb}, s{s_x}, 2")
    p(f"s_add_u32 s{s_rb}, s{s_rb}, s{s_t0}")
    p(f"s_lshr_b32 s{s_t1}, s{s_x}, 1")
    p(f"s_lshl_b32 s{s_t1}, s{s_t1}, 2")
    p(f"s_add_u32 s{s_rbk}, s{s_t1}, s{s_t0}")
    p(f"s_and_b32 s{s_t1}, s{s_x}, 1")
    p(f"s_mul_i32 s{s_t1}, s{s_t1}, 7")
    p(f"s_add_u32 s{s_fs}, s{s_t1}, s{s_cb}")
    p(f"s_and_b32 s{s_wt}, s{s_w}, 1")
    p(f"s_lshr_b32 s{s_wf}, s{s_w}, 1")
    p(f"s_lshl_b32 s{s_w4k}, s{s_w}, 12")
    p("s_waitcnt lgkmcnt(0)")
    ptr = lambda n: P + 2 * n
    srd(p, sQ, ptr(0), S*D*2); srd(p, sK, ptr(1), S*D*2); srd(p, sV, ptr(2), S*D*2)
    srd(p, sSK, ptr(3), D*4*2); srd(p, sSD, ptr(5), D*2)
    srd(p, sWG, ptr(7), D*F*2)
    p(f"s_cmp_eq_u32 s{s_wf}, 0")
    p(f"s_cselect_b32 s{sWW}, s{ptr(7)}, s{ptr(8)}")
    p(f"s_cselect_b32 s{sWW+1}, s{ptr(7)+1}, s{ptr(8)+1}")
    p(f"s_and_b32 s{sWW+1}, s{sWW+1}, 0xffff")
    p(f"s_mov_b32 s{sWW+2}, {D*F*2}")
    p(f"s_mov_b32 s{sWW+3}, 0x20000")
    srd(p, sWD, ptr(9), D*F*2); srd(p, sOUT, ptr(10), S*D*2)
    srd(p, sDBG, ptr(11), 256); srd(p, sWS, ptr(12), WS_BYTES)
    srd(p, sSSM, ptr(4), S*D*2)
    p(f"s_or_b32 s{s_t0}, s2, s{s_w}")
    p(f"s_cmp_lg_u32 s{s_t0}, 0")
    p("s_cbranch_scc1 L_nononce")
    p.raw(f"s_memrealtime s[{s_T}:{s_T+1}]")
    p.raw("s_waitcnt lgkmcnt(0)")
    p.raw(f"s_or_b32 s{s_T}, s{s_T}, 1")
    p.raw(f"v_mov_b32 v4, s{s_T}")
    p.raw("v_mov_b32 v5, 0")
    p.raw(f"buffer_store_dword v4, v5, s[{sDBG}:{sDBG+3}], 0 offen sc1")
    p.raw("s_waitcnt vmcnt(0)")
    p("L_nononce:")
    p(f"s_lshr_b32 s{s_t0}, s{s_fs}, 1")
    for c in range(7):
        p(f"s_add_u32 s{s_t1}, s{s_t0}, {c}")
        p(f"s_cmp_ge_u32 s{s_t1}, 7")
        p(f"s_cselect_b32 s{s_t2}, 7, 0")
        p(f"s_sub_u32 s{s_t1}, s{s_t1}, s{s_t2}")
        p(f"s_lshl_b32 s{s_c+c}, s{s_t1}, 7")
        p(f"s_mul_i32 s{s_cw+c}, s{s_t1}, 229376")

def get_nonce(p, tag):
    p.raw(f"s_mov_b32 s{s_cnt}, 0")
    p.raw("v_mov_b32 v5, 0")
    p.raw(f"L_nonce_{tag}:")
    p.raw(f"buffer_load_dword v4, v5, s[{sDBG}:{sDBG+3}], 0 offen sc1")
    p.raw(f"s_add_u32 s{s_cnt}, s{s_cnt}, 1")
    p.raw("s_waitcnt vmcnt(0)")
    p.raw(f"v_readfirstlane_b32 s{s_nonce}, v4")
    p.raw(f"s_cmp_gt_u32 s{s_cnt}, 100000")
    p.raw(f"s_cbranch_scc1 L_nonce_{tag}_done")
    p.raw(f"s_cmp_eq_u32 s{s_nonce}, 0")
    p.raw(f"s_cbranch_scc1 L_nonce_{tag}")
    p.raw(f"L_nonce_{tag}_done:")
    p("s_waitcnt vmcnt(0)")

def post_flag(p, soff_reg, tag):
    p("s_waitcnt vmcnt(0) lgkmcnt(0)")
    p("s_barrier")
    p(f"s_cmp_lg_u32 s{s_w}, 0")
    p(f"s_cbranch_scc1 L_pf_{tag}")
    p.raw(f"v_mov_b32 v4, s{s_nonce}")
    p.raw("v_mov_b32 v5, 0")
    p.raw(f"s_mov_b64 s[{s_sv}:{s_sv+1}], exec")
    p.raw("s_mov_b64 exec, 1")
    p.raw(f"buffer_store_dword v4, v5, s[{sWS}:{sWS+3}], s{soff_reg} offen sc1")
    p.raw(f"s_mov_b64 exec, s[{s_sv}:{s_sv+1}]")
    p.raw("s_waitcnt vmcnt(0)")
    p(f"L_pf_{tag}:")

def wait_flags(p, soff_reg, count, tag):
    p("s_waitcnt vmcnt(0)")
    p.raw(f"v_min_u32 v5, {count-1}, v1")
    p.raw("v_lshlrev_b32 v5, 2, v5")
    p.raw(f"s_mov_b32 s{s_cnt}, 0")
    p.raw(f"L_wf_{tag}:")
    p.raw(f"buffer_load_dword v4, v5, s[{sWS}:{sWS+3}], s{soff_reg} offen sc1")
    p.raw(f"s_add_u32 s{s_cnt}, s{s_cnt}, 1")
    p.raw("s_waitcnt vmcnt(0)")
    p.raw(f"v_cmp_ne_u32 vcc, s{s_nonce}, v4")
    p.raw(f"s_cmp_gt_u32 s{s_cnt}, 100000")
    p.raw(f"s_cbranch_scc1 L_wf_{tag}_done")
    p.raw("s_cmp_lg_u64 vcc, 0")
    p.raw(f"s_cbranch_scc1 L_wf_{tag}")
    p.raw(f"L_wf_{tag}_done:")
    p("s_nop 0")

def phase0(p):
    T = 192
    vk = [T + 4*j for j in range(5)]
    vv = [T + 20, T + 24]
    vw = T + 28
    off = [8, 9, 10, 11]
    p("v_and_b32 v4, 7, v0")
    p("v_lshrrev_b32 v5, 3, v0")
    p(f"s_lshl_b32 s{s_t0}, s{s_rb}, 6")
    p("v_lshlrev_b32 v6, 1, v5")
    p(f"v_add_u32 v6, s{s_t0}, v6")
    p(f"s_lshl_b32 s{s_t1}, s{s_cb}, 7")
    p("v_lshlrev_b32 v7, 4, v4")
    p(f"v_add_u32 v7, s{s_t1}, v7")
    p("v_mul_u32_u24 v8, 896, v6")
    p("v_add_u32 v11, v8, v7")
    p("v_subrev_u32 v8, 2688, v11")
    p("v_subrev_u32 v9, 1792, v11")
    p("v_subrev_u32 v10, 896, v11")
    for j in range(3):
        p(f"buffer_load_dwordx4 v[{vk[j]}:{vk[j]+3}], v{8+j}, s[{sK}:{sK+3}], 0 offen")
    p(f"buffer_load_dwordx4 v[{vk[3]}:{vk[3]+3}], v11, s[{sK}:{sK+3}], 0 offen")
    p(f"buffer_load_dwordx4 v[{vk[4]}:{vk[4]+3}], v11, s[{sK}:{sK+3}], 0 offen offset:896")
    p(f"buffer_load_dwordx4 v[{vv[0]}:{vv[0]+3}], v11, s[{sV}:{sV+3}], 0 offen")
    p(f"buffer_load_dwordx4 v[{vv[1]}:{vv[1]+3}], v11, s[{sV}:{sV+3}], 0 offen offset:896")
    p("v_lshlrev_b32 v12, 2, v7")
    for j in range(4):
        p(f"buffer_load_dwordx4 v[{vw+4*j}:{vw+4*j+3}], v12, s[{sSK}:{sSK+3}], 0 offen offset:{16*j}")
    p("v_sub_u32 v13, 31, v5")
    p("v_lshrrev_b32 v14, 2, v13")
    p("v_xor_b32 v14, v14, v4")
    p("v_lshlrev_b32 v14, 4, v14")
    p("v_and_b32 v13, 3, v13")
    p("v_lshl_add_u32 v14, v13, 2, v14")
    p("v_lshl_add_u32 v14, v4, 10, v14")
    p(f"v_add_u32 v14, {L_KT}, v14")
    cmp = []
    t = T + 44
    for e in range(8):
        d, hi = e // 2, e % 2
        def unp(dst, src):
            return f"v_and_b32 v{dst}, 0xffff0000, v{src}" if hi else f"v_lshlrev_b32 v{dst}, 16, v{src}"
        for j in range(5): p(unp(t + j, vk[j] + d))
        p(unp(t + 5, vv[0] + d)); p(unp(t + 6, vv[1] + d))
        w01, w23 = vw + 2*e, vw + 2*e + 1
        p(f"v_lshlrev_b32 v{t+7}, 16, v{w01}")
        p(f"v_and_b32 v{t+8}, 0xffff0000, v{w01}")
        p(f"v_lshlrev_b32 v{t+9}, 16, v{w23}")
        p(f"v_and_b32 v{t+10}, 0xffff0000, v{w23}")
        p(f"v_mul_f32 v{t+11}, v{t}, v{t+10}")
        p(f"v_mul_f32 v{t+12}, v{t+1}, v{t+10}")
        p(f"v_fmac_f32 v{t+11}, v{t+1}, v{t+9}")
        p(f"v_fmac_f32 v{t+12}, v{t+2}, v{t+9}")
        p(f"v_fmac_f32 v{t+11}, v{t+2}, v{t+8}")
        p(f"v_fmac_f32 v{t+12}, v{t+3}, v{t+8}")
        p(f"v_fmac_f32 v{t+11}, v{t+3}, v{t+7}")
        p(f"v_fmac_f32 v{t+12}, v{t+4}, v{t+7}")
        p(f"v_mul_f32 v{t+11}, v{t+11}, v{t+5}")
        p(f"v_mul_f32 v{t+12}, v{t+12}, v{t+6}")
        p(f"v_cvt_pk_bf16_f32 v{t+13+(e%2)}, v{t+12}, v{t+11}")
        p(f"ds_write_b32 v14, v{t+13+(e%2)} offset:{128*e}", tok='kt')
    p.wait('kt')
    p("s_barrier")
    p("v_lshrrev_b32 v8, 3, v5")
    p("v_xor_b32 v8, v8, v4")
    p("v_lshlrev_b32 v8, 4, v8")
    p("v_lshl_add_u32 v8, v5, 7, v8")
    p(f"v_add_u32 v8, {L_KT}, v8")
    p("v_xor_b32 v9, 64, v8")
    p(f"ds_read_b128 v[{T}:{T+3}], v8")
    p(f"ds_read_b128 v[{T+4}:{T+7}], v9 offset:4096")
    p("v_lshlrev_b32 v10, 12, v5")
    p("v_lshl_add_u32 v10, v4, 4, v10")
    p(f"s_lshl_b32 s{s_t0}, s{s_cb}, 18")
    p(f"s_lshl_b32 s{s_t1}, s{s_rb}, 7")
    p(f"s_sub_u32 s{s_t0}, s{s_t0}, s{s_t1}")
    p(f"s_add_u32 s{s_off}, s{s_t0}, {WS_KVR + 3968}")
    p(f"s_add_u32 s{s_off+1}, s{s_off}, {32*4096}")
    p(f"buffer_store_dwordx4 v[{T}:{T+3}], v10, s[{sWS}:{sWS+3}], s{s_off} offen sc1")
    p(f"buffer_store_dwordx4 v[{T+4}:{T+7}], v10, s[{sWS}:{sWS+3}], s{s_off+1} offen sc1")

vXD, vWDm, vXR, vA0, vA1 = 16, 20, 24, 32, 36
vSEL, vMS, vCG, vCU = 40, 44, 48, 52
ACC = lambda bank, mat, n: 128 + 64*bank + 32*mat + 16*n
XF = lambda g, n: (g*2 + n) * 4
AF = lambda buf, mat: 224 + 8*buf + 4*mat

def g1_setup(p):
    p("v_lshrrev_b32 v4, 3, v1")
    p("v_and_b32 v5, 7, v1")
    p("v_lshrrev_b32 v6, 4, v1")
    p("v_xor_b32 v7, v5, v6")
    p("v_lshlrev_b32 v7, 4, v7")
    p(f"s_lshl_b32 s{s_t0}, s{s_rbk}, 7")
    p(f"s_lshl_b32 s{s_t1}, s{s_w}, 5")
    p(f"s_add_u32 s{s_t0}, s{s_t0}, s{s_t1}")
    p(f"v_add_u32 v8, s{s_t0}, v4")
    p("v_mul_u32_u24 v8, 896, v8")
    p(f"v_add_u32 v{vXD}, v8, v7")
    p(f"v_add_u32 v{vXD+2}, {2*6144}, v{vXD}")
    p(f"v_xor_b32 v{vXD+1}, 64, v{vXD}")
    p(f"v_add_u32 v{vXD+3}, {3*6144}, v{vXD+1}")
    p(f"v_add_u32 v{vXD+1}, {6144}, v{vXD+1}")
    p("v_and_b32 v7, 1, v6")
    p("v_lshlrev_b32 v7, 2, v7")
    p("v_xor_b32 v7, v5, v7")
    p("v_lshlrev_b32 v7, 4, v7")
    p(f"s_lshl_b32 s{s_t0}, s{s_wt}, 5")
    p(f"v_add_u32 v8, s{s_t0}, v4")
    p("v_mul_u32_u24 v8, 3584, v8")
    p(f"s_lshl_b32 s{s_t1}, s{s_fs}, 8")
    p(f"v_add3_u32 v{vWDm}, v8, v7, s{s_t1}")
    for j in range(1, 4):
        p(f"v_add_u32 v{vWDm+j}, {j*(8*3584-1024)}, v{vWDm}")
    p(f"s_and_b32 s{s_t0}, s{s_fs}, 1")
    p(f"s_lshl_b32 s{s_t0}, s{s_t0}, 1")
    p(f"s_xor_b32 s{s_t0}, s{s_t0}, s{s_wt}")
    p("v_and_b32 v4, 31, v1")
    p("v_lshrrev_b32 v5, 5, v1")
    p("v_lshrrev_b32 v6, 1, v4")
    p("v_and_b32 v6, 7, v6")
    p(f"s_lshl_b32 s{s_t1}, s{s_t0}, 1")
    p(f"v_or_b32 v7, s{s_t1}, v5")
    p("v_xor_b32 v7, v7, v6")
    p("v_lshlrev_b32 v7, 4, v7")
    p("v_lshl_add_u32 v7, v4, 7, v7")
    p(f"s_lshl_b32 s{s_t1}, s{s_wt}, 13")
    p(f"s_lshl_b32 s{s_t2}, s{s_wf}, 12")
    p(f"s_add_u32 s{s_t1}, s{s_t1}, s{s_t2}")
    p(f"v_add_u32 v7, s{s_t1}, v7")
    for sp in range(4):
        p(f"v_xor_b32 v{vXR+2*sp}, {32*sp}, v7")
        p(f"v_xor_b32 v{vXR+2*sp+1}, {32*sp + 4096}, v7")
    p("v_and_b32 v4, 3, v1")
    p("v_bfe_u32 v5, v1, 2, 2")
    p("v_bfe_u32 v6, v1, 4, 1")
    p("v_lshrrev_b32 v7, 5, v1")
    p("v_lshrrev_b32 v8, 1, v5")
    p(f"v_xor_b32 v8, s{s_wf}, v8")
    p("v_lshlrev_b32 v8, 6, v8")
    p("v_lshl_add_u32 v8, v6, 5, v8")
    p("v_lshl_add_u32 v8, v4, 3, v8")
    p("v_lshl_add_u32 v8, v5, 7, v8")
    p("v_lshl_add_u32 v8, v7, 10, v8")
    p(f"s_lshl_b32 s{s_t1}, s{s_t0}, 11")
    p(f"v_add_u32 v8, s{s_t1}, v8")
    for sp in range(4):
        p(f"v_xor_b32 v{vA0+sp}, {2048*sp}, v8")
        p(f"v_add_u32 v{vA1+sp}, 65536, v{vA0+sp}")
    p("v_and_b32 v4, 15, v1")
    p("v_bfe_u32 v5, v1, 4, 1")
    p("v_cmp_eq_u32 vcc, v4, v5")
    p("v_mov_b32 v6, 0x3f803f80")
    for j in range(4):
        p(f"v_cndmask_b32 v{vSEL+j}, 0, v6, vcc")
    for j in range(12):
        p(f"v_mov_b32 v{vMS+j}, 0")
    p("v_mov_b32 v4, 0")
    p("v_lshlrev_b32 v5, 2, v0")
    p(f"ds_write_b32 v5, v4 offset:{L_C - 0}" if L_C < 65536 else "v_add_u32 v5, %d, v5" % L_C)
    if L_C >= 65536: p("ds_write_b32 v5, v4", tok='czero')
    p(f"s_lshl_b32 s{s_t0}, s{s_rbk}, 2")
    p(f"s_lshl_b32 s{s_t1}, s{s_wt}, 1")
    p(f"s_add_u32 s{s_t0}, s{s_t0}, s{s_t1}")
    p(f"s_add_u32 s{s_t1}, s{s_t0}, s{s_wf}")
    p(f"s_xor_b32 s{s_t2}, s{s_t1}, 1")
    p(f"s_lshl_b32 s{s_t3}, s{s_fs}, 2")
    p(f"s_add_u32 s{s_t3}, s{s_t3}, s{s_wf}")
    for r, src in ((s_h0, s_t1), (s_h1, s_t2)):
        p(f"s_mul_i32 s{r}, s{src}, 56")
        p(f"s_add_u32 s{r}, s{r}, s{s_t3}")
        p(f"s_lshl_b32 s{r}, s{r}, 11")
        p(f"s_add_u32 s{r}, s{r}, {WS_H}")

def dma_x(p, c, slot, tok):
    p(f"s_add_u32 m0, s{s_w4k}, {XSLOT(slot)}")
    for j in range(4):
        p(f"buffer_load_dwordx4 v{vXD+j}, s[{sQ}:{sQ+3}], s{s_c+c} offen offset:{1024*j} lds", tok=tok)

def dma_w(p, pas, c, lds, tok):
    p(f"s_add_u32 m0, s{s_w4k}, {lds}")
    if pas == 0:
        so = s_cw + c
    else:
        p(f"s_add_u32 s{s_off}, s{s_cw+c}, 128")
        so = s_off
    for j in range(4):
        p(f"buffer_load_dwordx4 v{vWDm+j}, s[{sWW}:{sWW+3}], s{so} offen offset:{1024*j} lds", tok=tok)

P2SLOT = [WSLOT(3), XSLOT(3), WSLOT(0), XSLOT(0), WSLOT(1), XSLOT(1), WSLOT(2)]

def a_reads(p, lds, sp, buf):
    base = vA1 if lds >= 65536 else vA0
    o = lds - 65536 if lds >= 65536 else lds
    for mat in range(2):
        for u in range(2):
            r = AF(buf, mat) + 2*u
            p(f"ds_read_b64_tr_b16 a[{r}:{r+1}], v{base+sp} offset:{o + 8192*mat + 512*u}")

def g1_step(p, pas, c, sp, lds_w, xslot, bank):
    g = 4*c + sp
    buf = g % 4
    if pas == 0:
        for n in range(2):
            r = XF(g, n)
            p(f"ds_read_b128 a[{r}:{r+3}], v{vXR+2*sp+n} offset:{XSLOT(xslot)}")
    a_reads(p, lds_w, sp, buf)
    first = (g == 0)
    for mat in range(2):
        for n in range(2):
            d = ACC(bank, mat, n); a = AF(buf, mat); b = XF(g, n)
            p(f"v_mfma_f32_32x32x16_bf16 v[{d}:{d+15}], a[{a}:{a+3}], a[{b}:{b+3}], " + ("0" if first else f"v[{d}:{d+15}]"))
    if pas == 0:
        b = XF(g, 0)
        p(f"v_mfma_f32_16x16x32_bf16 v[{vMS}:{vMS+3}], v[{vSEL}:{vSEL+3}], a[{b}:{b+3}], v[{vMS}:{vMS+3}]")
    if sp % 2 == 0:
        for mat, acc in ((0, vCG), (1, vCU)):
            a = AF(buf, mat)
            p(f"v_mfma_f32_16x16x32_bf16 v[{acc}:{acc+3}], v[{vSEL}:{vSEL+3}], a[{a}:{a+3}], v[{acc}:{acc+3}]")

def g1_select_out(p, pas):
    p(f"s_mov_b64 s[{s_sv}:{s_sv+1}], exec")
    p("s_mov_b64 exec, 0xffff")
    p("v_lshlrev_b32 v4, 2, v1")
    if pas == 0:
        p(f"s_mov_b32 s{s_t0}, 0x3b124925")
        for j in range(2):
            p(f"v_mul_f32 v{5+j}, s{s_t0}, v{vMS+j}")
        p("v_cvt_pk_bf16_f32 v7, v5, v6")
        p("v_lshlrev_b32 v5, 16, v7")
        p("v_and_b32 v6, 0xffff0000, v7")
        p(f"s_lshl_b32 s{s_t0}, s{s_wt}, 8")
        p(f"s_lshl_b32 s{s_t1}, s{s_wf}, 7")
        p(f"s_add_u32 s{s_t0}, s{s_t0}, s{s_t1}")
        p(f"s_add_u32 s{s_t0}, s{s_t0}, {L_M}")
        p(f"v_add_u32 v8, s{s_t0}, v4")
        p("ds_write_b32 v8, v5", tok='sel')
        p("ds_write_b32 v8, v6 offset:64", tok='sel')
    p(f"s_lshl_b32 s{s_t1}, s{s_wf}, 7")
    p(f"s_add_u32 s{s_t1}, s{s_t1}, {L_C + 512*pas}")
    p(f"v_add_u32 v8, s{s_t1}, v4")
    for mat, acc in ((0, vCG), (1, vCU)):
        for j in range(2):
            p(f"ds_add_f32 v8, v{acc+j} offset:{256*mat + 64*j}", tok='sel')
    p(f"s_mov_b64 exec, s[{s_sv}:{s_sv+1}]")
    if pas == 0:
        for j in range(8): p(f"v_mov_b32 v{vCG+j}, 0")

def g1_epilogue(p, pas, bank):
    cg, cu, vm = 56, 72, 88
    t = 96
    p("v_lshrrev_b32 v4, 5, v1")
    p("v_lshlrev_b32 v4, 4, v4")
    p(f"s_lshl_b32 s{s_t1}, s{s_wf}, 7")
    p(f"s_add_u32 s{s_t1}, s{s_t1}, {L_C + 512*pas}")
    p(f"v_add_u32 v4, s{s_t1}, v4")
    for g in range(4):
        p(f"ds_read_b128 v[{cg+4*g}:{cg+4*g+3}], v4 offset:{32*g}")
        p(f"ds_read_b128 v[{cu+4*g}:{cu+4*g+3}], v4 offset:{256+32*g}")
    if pas == 0:
        p("v_and_b32 v5, 31, v1")
        p("v_lshlrev_b32 v5, 2, v5")
        p(f"s_lshl_b32 s{s_t0}, s{s_wt}, 8")
        p(f"s_lshl_b32 s{s_t1}, s{s_wf}, 7")
        p(f"s_add_u32 s{s_t0}, s{s_t0}, s{s_t1}")
        p(f"s_add_u32 s{s_t0}, s{s_t0}, {L_M}")
        p(f"v_add_u32 v5, s{s_t0}, v5")
        p("v_xor_b32 v6, 128, v5")
        p(f"ds_read_b32 v{vm}, v5")
        p(f"ds_read_b32 v{vm+1}, v6")
    for n in range(2):
        G, U = ACC(bank, 0, n), ACC(bank, 1, n)
        for j in range(2):
            for e in range(8):
                i = 8*j + e
                p(f"v_fma_f32 v{G+i}, -v{vm+n}, v{cg+i}, v{G+i}")
                p(f"v_fma_f32 v{U+i}, -v{vm+n}, v{cu+i}, v{U+i}")
                p(f"v_max_f32 v{G+i}, 0, v{G+i}")
                p(f"v_mul_f32 v{G+i}, v{G+i}, v{U+i}")
            o = t + 8*n + 4*j
            for m in range(4):
                p(f"v_cvt_pk_bf16_f32 v{o+m}, v{G+8*j+2*m}, v{G+8*j+2*m+1}")
            p(f"s_add_u32 s{s_off}, s{s_h0+n}, {4096*pas}")
            p(f"buffer_store_dwordx4 v[{o}:{o+3}], v2, s[{sWS}:{sWS+3}], s{s_off} offen offset:{1024*j} sc1")

def g1_stats(p):
    t = 96
    for sp in range(2):
        for j in range(4):
            p(f"v_accvgpr_read_b32 v{t+4*sp+j}, a{XF(sp, 0)+j}")
    s, q = t + 8, t + 9
    for k in range(8):
        p(f"v_lshlrev_b32 v{t+10}, 16, v{t+k}")
        p(f"v_and_b32 v{t+11}, 0xffff0000, v{t+k}")
        if k == 0:
            p(f"v_add_f32 v{s}, v{t+10}, v{t+11}")
            p(f"v_mul_f32 v{q}, v{t+10}, v{t+10}")
        else:
            p(f"v_add_f32 v{s}, v{s}, v{t+10}")
            p(f"v_fmac_f32 v{q}, v{t+10}, v{t+10}")
            p(f"v_add_f32 v{s}, v{s}, v{t+11}")
        p(f"v_fmac_f32 v{q}, v{t+11}, v{t+11}")
    p(f"v_permlane32_swap_b32 v{s}, v{q}")
    p(f"v_add_f32 v{s}, v{s}, v{q}")
    p("v_lshrrev_b32 v4, 5, v1")
    p("v_lshlrev_b32 v4, 9, v4")
    p("v_and_b32 v5, 31, v1")
    p("v_lshl_add_u32 v4, v5, 2, v4")
    p(f"s_mul_i32 s{s_t0}, s{s_rbk}, 14")
    p(f"s_add_u32 s{s_t0}, s{s_t0}, s{s_fs}")
    p(f"s_lshl_b32 s{s_t0}, s{s_t0}, 10")
    p(f"s_lshl_b32 s{s_t1}, s{s_wt}, 8")
    p(f"s_add_u32 s{s_t0}, s{s_t0}, s{s_t1}")
    p(f"s_lshl_b32 s{s_t1}, s{s_wf}, 7")
    p(f"s_add_u32 s{s_t0}, s{s_t0}, s{s_t1}")
    p(f"s_add_u32 s{s_off}, s{s_t0}, {WS_ST}")
    p(f"buffer_store_dword v{s}, v4, s[{sWS}:{sWS+3}], s{s_off} offen sc1")

def gemm1(p):
    g1_setup(p)
    for c in range(4):
        dma_x(p, c, c, f"x{c}"); dma_w(p, 0, c, WSLOT(c), f"w0{c}")
    for c in range(7):
        p.wait(f"x{c}", f"w0{c}", 'czero')
        p("s_barrier")
        if c >= 1:
            pc = c - 1
            if pc + 4 <= 6:
                dma_x(p, pc + 4, pc % 4, f"x{pc+4}"); dma_w(p, 0, pc + 4, WSLOT(pc % 4), f"w0{pc+4}")
            else:
                k = 2*(pc - 3)
                for kk in (k, k + 1):
                    if kk <= 6: dma_w(p, 1, kk, P2SLOT[kk], f"w1{kk}")
        for sp in range(4):
            g1_step(p, 0, c, sp, WSLOT(c % 4), c % 4, 0)
        p("s_waitcnt lgkmcnt(0)")
    stamp(p, 2)
    g1_stats(p)
    g1_select_out(p, 0)
    for c in range(7):
        p.wait(f"w1{c}", 'sel')
        p("s_barrier")
        if c == 0:
            dma_w(p, 1, 6, P2SLOT[6], "w16")
            g1_epilogue(p, 0, 0)
        for sp in range(4):
            g1_step(p, 1, c, sp, P2SLOT[c], None, 1)
        p("s_waitcnt lgkmcnt(0)")
        if c == 0:
            p(f"s_lshl_b32 s{s_t0}, s{s_rbk}, 9")
            p(f"s_lshl_b32 s{s_t1}, s{s_fs}, 2")
            p(f"s_add_u32 s{s_t0}, s{s_t0}, s{s_t1}")
            p(f"s_add_u32 s{s_t3}, s{s_t0}, {WS_F1}")
            post_flag(p, s_t3, "h0")
    stamp(p, 3)
    g1_select_out(p, 1)
    p.wait('sel')
    p("s_barrier")
    g1_epilogue(p, 1, 1)
    p(f"s_lshl_b32 s{s_t0}, s{s_rbk}, 9")
    p(f"s_lshl_b32 s{s_t1}, s{s_fs}, 2")
    p(f"s_add_u32 s{s_t0}, s{s_t0}, s{s_t1}")
    p(f"s_add_u32 s{s_t3}, s{s_t0}, {WS_F1 + 256}")
    post_flag(p, s_t3, "h1")

def conv(p):
    p(f"s_lshr_b32 s{s_t0}, s2, 5")
    p(f"s_lshl_b32 s{s_t0}, s{s_t0}, 8")
    p(f"s_add_u32 s{s_t3}, s{s_t0}, {WS_F0}")
    wait_flags(p, s_t3, 32, "kv")
    T = 192
    p(f"s_lshl_b32 s{s_t0}, s2, 1")
    p(f"s_add_u32 s{s_t0}, s{s_t0}, s{s_wf}")
    p(f"s_lshl_b32 s{s_t1}, s{s_t0}, 12")
    p(f"s_lshl_b32 s{s_t2}, s{s_wt}, 11")
    p(f"s_add_u32 s{s_t2}, s{s_t2}, s{s_t1}")
    p(f"s_add_u32 s{s_off}, s{s_t2}, {WS_KVR}")
    for j in range(2):
        p(f"buffer_load_dwordx4 v[{T+4*j}:{T+4*j+3}], v2, s[{sWS}:{sWS+3}], s{s_off} offen offset:{1024*j} sc1")
    p(f"s_add_u32 s{s_off+1}, s{s_t2}, 0")
    for jj in range(2):
        for k in range(3):
            r = T + 8 + 12*jj + 4*k
            p(f"buffer_load_dwordx4 v[{r}:{r+3}], v2, s[{sSSM}:{sSSM+3}], s{s_off+1} offen offset:{1024*jj + 4*k}")
    p("v_mov_b32 v4, 0")
    p(f"buffer_load_dwordx2 v[{T+32}:{T+33}], v4, s[{sSSM}:{sSSM+3}], s{s_t1} offen")
    p(f"s_lshl_b32 s{s_t0}, s{s_t0}, 1")
    p(f"buffer_load_ushort v15, v4, s[{sSD}:{sSD+3}], s{s_t0} offen")
    p(f"s_mul_i32 s{s_t0}, s{s_wf}, {XRSTR}")
    p(f"s_lshl_b32 s{s_t2}, s{s_wt}, 11")
    p(f"s_add_u32 s{s_t0}, s{s_t0}, s{s_t2}")
    p(f"s_add_u32 s{s_t0}, s{s_t0}, {L_XR}")
    p(f"v_add_u32 v5, s{s_t0}, v2")
    for j in range(2):
        p(f"ds_write_b128 v5, v[{T+4*j}:{T+4*j+3}] offset:{1024*j}", tok='cv')
    for j in range(4): p(f"v_mov_b32 v{8+j}, 0")
    p(f"s_mul_i32 s{s_t0}, s{s_wf}, {XRSTR}")
    p(f"s_add_u32 s{s_t0}, s{s_t0}, {L_XR + 4096}")
    p("v_and_b32 v6, 31, v1")
    p("v_lshlrev_b32 v6, 4, v6")
    p(f"v_add_u32 v6, s{s_t0}, v6")
    p("ds_write_b128 v6, v[8:11]", tok='cv')
    p(f"s_mul_i32 s{s_t0}, s{s_wf}, {HCH}")
    p(f"s_lshl_b32 s{s_t2}, s{s_wt}, 11")
    p(f"s_add_u32 s{s_t0}, s{s_t0}, s{s_t2}")
    p(f"s_add_u32 s{s_t0}, s{s_t0}, {L_H + 32}")
    p(f"v_add_u32 v5, s{s_t0}, v2")
    tt = T + 36
    for jj in range(2):
        L0, L1, L2 = T + 8 + 12*jj, T + 12 + 12*jj, T + 16 + 12*jj
        p(f"ds_write_b128 v5, v[{L0}:{L0+3}] offset:{1024*jj}", tok='cv')
        for k in range(4):
            p(f"v_alignbit_b32 v{tt+k}, v{L1+k}, v{L0+k}, 16")
        p(f"ds_write_b128 v5, v[{tt}:{tt+3}] offset:{1024*jj + HSTR}", tok='cv')
        p(f"ds_write_b128 v5, v[{L1}:{L1+3}] offset:{1024*jj + 2*HSTR}", tok='cv')
        for k in range(4):
            p(f"v_alignbit_b32 v{tt+4+k}, v{L2+k}, v{L1+k}, 16")
        p(f"ds_write_b128 v5, v[{tt+4}:{tt+7}] offset:{1024*jj + 3*HSTR}", tok='cv')
    h0, h1 = T + 32, T + 33
    p("v_bfe_u32 v6, v1, 3, 2")
    p("v_and_b32 v7, 7, v1")
    p("v_mov_b32 v8, 0")
    p(f"v_lshlrev_b32 v9, 16, v{h0}")
    p(f"v_alignbit_b32 v10, v{h1}, v{h0}, 16")
    p("v_lshl_add_u32 v11, v6, 3, v7")
    for val, src in ((15, 9), (23, "h0"), (31, 10), (30, 9)):
        p(f"v_cmp_eq_u32 vcc, {val}, v11")
        p(f"v_cndmask_b32 v8, v8, v{h0 if src == 'h0' else src}, vcc")
    p(f"v_mul_u32_u24 v6, {HSTR}, v6")
    p("v_lshl_add_u32 v6, v7, 2, v6")
    p(f"s_mul_i32 s{s_t0}, s{s_wf}, {HCH}")
    p(f"s_add_u32 s{s_t0}, s{s_t0}, {L_H}")
    p(f"v_add_u32 v6, s{s_t0}, v6")
    p("ds_write_b32 v6, v8", tok='cv')
    vB, vA = 16, 17
    p("v_and_b32 v4, 15, v1")
    p("v_lshrrev_b32 v5, 4, v1")
    p("v_lshlrev_b32 v6, 5, v4")
    p("v_lshlrev_b32 v7, 4, v5")
    p("v_sub_u32 v7, v7, v6")
    p(f"s_mul_i32 s{s_t0}, s{s_wf}, {XRSTR}")
    p(f"s_lshl_b32 s{s_t2}, s{s_wt}, 8")
    p(f"s_add_u32 s{s_t0}, s{s_t0}, s{s_t2}")
    p(f"s_add_u32 s{s_t0}, s{s_t0}, {L_XR + 4064 - 3584}")
    p(f"v_add_u32 v{vB}, s{s_t0}, v7")
    p("v_add_u32 v6, 1, v4")
    p("v_and_b32 v7, 3, v6")
    p("v_sub_u32 v6, v6, v7")
    p("v_lshlrev_b32 v6, 1, v6")
    p(f"v_mul_u32_u24 v7, {HSTR}, v7")
    p("v_add_u32 v6, v6, v7")
    p("v_lshl_add_u32 v6, v5, 4, v6")
    p(f"s_mul_i32 s{s_t0}, s{s_wf}, {HCH}")
    p(f"s_add_u32 s{s_t0}, s{s_t0}, s{s_t2}")
    p(f"s_add_u32 s{s_t0}, s{s_t0}, {L_H}")
    p(f"v_add_u32 v{vA}, s{s_t0}, v6")
    p.wait('cv')
    p("s_barrier")
    stamp(p, 5)
    acc = lambda t: 128 + 4*t
    BF = lambda s: 160 + 4*s
    AFc = lambda k: 192 + 4*k
    for t in range(8):
        for j in range(4): p(f"v_mov_b32 v{acc(t)+j}, 0")
    for rho in range(4):
        for s in range(8):
            p(f"ds_read_b128 v[{BF(s)}:{BF(s)+3}], v{vB} offset:{64*rho + 512*(7-s)}")
        for i in range(7, -1, -1):
            a = AFc(i % 4)
            p(f"ds_read_b64 v[{a}:{a+1}], v{vA} offset:{64*rho + 512*i}")
            p(f"ds_read_b64 v[{a+2}:{a+3}], v{vA} offset:{64*rho + 512*i + 8}")
            for t in range(i, 8):
                p(f"v_mfma_f32_16x16x32_bf16 v[{acc(t)}:{acc(t)+3}], v[{a}:{a+3}], v[{BF(t-i)}:{BF(t-i)+3}], v[{acc(t)}:{acc(t)+3}]")
    stamp(p, 6)
    p("s_waitcnt lgkmcnt(0)")
    p("s_barrier")
    p(f"s_xor_b32 s{s_t0}, s{s_w}, 1")
    p(f"s_lshl_b32 s{s_t0}, s{s_t0}, 12")
    p(f"v_add_u32 v4, s{s_t0}, v2")
    p(f"v_add_u32 v5, s{s_w4k}, v2")
    p("s_nop 7")
    p(f"s_cmp_eq_u32 s{s_wt}, 0")
    p("s_cbranch_scc1 L_cv_lo")
    for k in range(4):
        p.raw(f"ds_write_b128 v4, v[{acc(k)}:{acc(k)+3}] offset:{1024*k}")
    for k in range(16):
        p.raw(f"v_mov_b32 v{160+k}, v{acc(4)+k}")
    p.raw("s_branch L_cv_join")
    p("L_cv_lo:")
    for k in range(4):
        p.raw(f"ds_write_b128 v4, v[{acc(4+k)}:{acc(4+k)+3}] offset:{1024*k}")
    for k in range(16):
        p.raw(f"v_mov_b32 v{160+k}, v{acc(0)+k}")
    p("L_cv_join:")
    p("s_waitcnt lgkmcnt(0)")
    p("s_barrier")
    for k in range(4):
        p(f"ds_read_b128 v[{176+4*k}:{176+4*k+3}], v5 offset:{1024*k}")
    p("v_and_b32 v6, 15, v1")
    p("v_lshrrev_b32 v7, 4, v1")
    p("v_lshlrev_b32 v6, 5, v6")
    p("v_lshl_add_u32 v6, v7, 3, v6")
    p(f"s_mul_i32 s{s_t0}, s{s_wf}, {XRSTR}")
    p(f"s_lshl_b32 s{s_t2}, s{s_wt}, 11")
    p(f"s_sub_u32 s{s_t0}, s{s_t0}, s{s_t2}")
    p(f"s_add_u32 s{s_t0}, s{s_t0}, {L_XR + 2*2044 - 3*512}")
    p(f"v_sub_u32 v7, s{s_t0}, v6")
    for k in range(4):
        p(f"ds_read_b64 v[{192+2*k}:{192+2*k+1}], v7 offset:{512*(3-k)}")
    p("v_lshlrev_b32 v15, 16, v15")
    for k in range(4):
        for r in range(4):
            p(f"v_add_f32 v{160+4*k+r}, v{160+4*k+r}, v{176+4*k+r}")
        a, b = 192 + 2*k, 192 + 2*k + 1
        p(f"v_and_b32 v8, 0xffff0000, v{b}")
        p(f"v_lshlrev_b32 v9, 16, v{b}")
        p(f"v_and_b32 v10, 0xffff0000, v{a}")
        p(f"v_lshlrev_b32 v11, 16, v{a}")
        for r in range(4):
            p(f"v_fmac_f32 v{160+4*k+r}, v15, v{8+r}")
        p(f"v_cvt_pk_bf16_f32 v{200+2*k}, v{160+4*k}, v{160+4*k+1}")
        p(f"v_cvt_pk_bf16_f32 v{200+2*k+1}, v{160+4*k+2}, v{160+4*k+3}")
    p(f"s_lshl_b32 s{s_t0}, s2, 1")
    p(f"s_add_u32 s{s_t0}, s{s_t0}, s{s_wf}")
    p(f"s_lshl_b32 s{s_t0}, s{s_t0}, 12")
    p(f"s_lshl_b32 s{s_t2}, s{s_wt}, 11")
    p(f"s_add_u32 s{s_t0}, s{s_t0}, s{s_t2}")
    p(f"s_add_u32 s{s_off}, s{s_t0}, {WS_YT}")
    for k in range(4):
        p(f"buffer_store_dwordx2 v[{200+2*k}:{200+2*k+1}], v6, s[{sWS}:{sWS+3}], s{s_off} offen offset:{512*k} sc1")
    p(f"s_lshr_b32 s{s_t0}, s2, 5")
    p(f"s_lshl_b32 s{s_t0}, s{s_t0}, 8")
    p(f"s_and_b32 s{s_t1}, s2, 31")
    p(f"s_lshl_b32 s{s_t1}, s{s_t1}, 2")
    p(f"s_add_u32 s{s_t0}, s{s_t0}, s{s_t1}")
    p(f"s_add_u32 s{s_t3}, s{s_t0}, {WS_F2}")
    post_flag(p, s_t3, "y")

vWDD, vWR, vHL = 16, 20, 24
def gemm2_setup(p):
    p("v_lshrrev_b32 v4, 3, v1")
    p("v_and_b32 v5, 7, v1")
    p("v_bfe_u32 v6, v1, 4, 1")
    p("v_lshlrev_b32 v6, 2, v6")
    p("v_xor_b32 v6, v5, v6")
    p("v_lshlrev_b32 v6, 4, v6")
    p(f"s_lshl_b32 s{s_t0}, s{s_wf}, 2")
    p(f"s_add_u32 s{s_t0}, s{s_t0}, s{s_wt}")
    p(f"s_lshl_b32 s{s_t0}, s{s_t0}, 5")
    p(f"v_add_u32 v4, s{s_t0}, v4")
    p("v_mul_u32_u24 v4, 896, v4")
    p(f"s_lshl_b32 s{s_t1}, s{s_cb}, 7")
    p(f"v_add3_u32 v{vWDD}, v4, v6, s{s_t1}")
    for j in range(1, 4):
        p(f"v_add_u32 v{vWDD+j}, {6144*j}, v{vWDD}")
    p("v_and_b32 v4, 3, v1")
    p("v_bfe_u32 v5, v1, 2, 2")
    p("v_bfe_u32 v6, v1, 4, 1")
    p("v_lshrrev_b32 v7, 5, v1")
    p("v_lshrrev_b32 v8, 1, v5")
    p("v_lshlrev_b32 v8, 6, v8")
    p("v_lshl_add_u32 v8, v6, 5, v8")
    p("v_lshl_add_u32 v8, v4, 3, v8")
    p("v_lshl_add_u32 v8, v5, 7, v8")
    p("v_lshl_add_u32 v8, v7, 9, v8")
    p(f"s_add_u32 s{s_t0}, s{s_w4k}, {L_WD}")
    p(f"v_add_u32 v{vWR}, s{s_t0}, v8")
    p(f"v_xor_b32 v{vWR+1}, 64, v{vWR}")
    p(f"v_add_u32 v{vWR+2}, 65536, v{vWR}")
    p(f"v_add_u32 v{vWR+3}, 65536, v{vWR+1}")
    p(f"s_lshl_b32 s{s_t0}, s{s_wf}, 2")
    p(f"s_add_u32 s{s_t0}, s{s_t0}, s{s_wt}")
    p(f"s_mul_i32 s{s_t1}, s{s_rb}, 112")
    p(f"s_add_u32 s{s_t0}, s{s_t0}, s{s_t1}")
    p(f"s_lshl_b32 s{s_t0}, s{s_t0}, 11")
    p(f"s_add_u32 s{s_h0}, s{s_t0}, {WS_H}")
    p(f"s_add_u32 s{s_h1}, s{s_h0}, {56*2048}")

def dma_wd(p, pas, a, tok):
    p(f"s_add_u32 m0, s{s_w4k}, {L_WD + 16384*a}")
    p(f"s_mov_b32 s{s_off}, {229376*a + 57344*pas}")
    for j in range(4):
        p(f"buffer_load_dwordx4 v{vWDD+j}, s[{sWD}:{sWD+3}], s{s_off} offen offset:{1024*j} lds", tok=tok)

def wd_reads(p, a, j, dst):
    f, base = dst
    for dt in range(2):
        for u in range(2):
            r = base + 4*dt + 2*u
            reg = vWR + dt + (2 if a >= 4 else 0)
            o = 16384*(a - 4 if a >= 4 else a) + 2048*j + 1024*u
            p(f"ds_read_b64_tr_b16 {f}[{r}:{r+1}], v{reg} offset:{o}")

def gemm2(p):
    gemm2_setup(p)
    ACC2 = lambda dt, n: 128 + 32*dt + 16*n
    for pas in range(2):
        for a in range(7): dma_wd(p, pas, a, f"wd{pas}{a}")
        p(f"s_lshr_b32 s{s_t0}, s{s_rb}, 1")
        p(f"s_lshl_b32 s{s_t0}, s{s_t0}, 9")
        p(f"s_add_u32 s{s_t3}, s{s_t0}, {WS_F1 + 256*pas}")
        wait_flags(p, s_t3, 14, f"h{pas}")
        p.wait(f"wd{pas}6")
        for a in range(7):
            for j in range(2):
                for n in range(2):
                    r = 8*(2*a + j) + 4*n
                    p(f"s_add_u32 s{s_off}, s{s_h0+n}, {(8*a + 2*pas)*2048}")
                    p(f"buffer_load_dwordx4 a[{r}:{r+3}], v2, s[{sWS}:{sWS+3}], s{s_off} offen offset:{1024*j} sc1")
        for a in range(7):
            for j in range(2):
                wd_reads(p, a, j, ('v', 192 + 8*j))
                for dt in range(2):
                    for n in range(2):
                        d = ACC2(dt, n); A = 192 + 8*j + 4*dt; B = 8*(2*a + j) + 4*n
                        first = (pas == 0 and a == 0 and j == 0)
                        p(f"v_mfma_f32_32x32x16_bf16 v[{d}:{d+15}], v[{A}:{A+3}], a[{B}:{B+3}], " + ("0" if first else f"v[{d}:{d+15}]"))
        p("s_waitcnt lgkmcnt(0)")
    stamp(p, 8)

def final(p):
    ACC2 = lambda dt, n: 128 + 32*dt + 16*n
    p("s_barrier")
    p("s_nop 7")
    p("s_nop 7")
    for wv in range(4):
        L = f"L_red_{wv}"
        p(f"s_cmp_lg_u32 s{s_w}, {wv}")
        p(f"s_cbranch_scc1 {L}")
        for k in range(4):
            if k == wv: continue
            slot = (wv - k - 1) % 4
            base = L_RED + (k*3 + slot)*4096
            for g in range(4):
                r = 128 + 16*k + 4*g
                p.raw(f"ds_write_b128 v2, v[{r}:{r+3}] offset:{base + 1024*g}")
        for i in range(16):
            p.raw(f"v_mov_b32 v{192+i}, v{128+16*wv+i}")
        p(f"{L}:")
    p(f"s_lshl_b32 s{s_t0}, s{s_cb}, 8")
    p(f"s_add_u32 s{s_t3}, s{s_t0}, {WS_F2}")
    wait_flags(p, s_t3, 32, "yt")
    p("v_lshrrev_b32 v4, 3, v1")
    p("v_and_b32 v5, 7, v1")
    p("v_xor_b32 v6, v5, v4")
    p("v_lshlrev_b32 v6, 4, v6")
    p(f"s_lshl_b32 s{s_t0}, s{s_rb}, 6")
    p(f"s_lshl_b32 s{s_t1}, s{s_w}, 4")
    p(f"s_add_u32 s{s_t0}, s{s_t0}, s{s_t1}")
    p(f"v_add_u32 v7, s{s_t0}, v4")
    p("v_mul_u32_u24 v7, 896, v7")
    p(f"s_lshl_b32 s{s_t1}, s{s_cb}, 7")
    p(f"v_add3_u32 v7, v7, v6, s{s_t1}")
    p("v_add_u32 v8, 6144, v7")
    p(f"s_lshl_b32 s{s_t0}, s{s_w}, 11")
    p(f"s_add_u32 m0, s{s_t0}, {L_QT}")
    p(f"buffer_load_dwordx4 v7, s[{sQ}:{sQ+3}], 0 offen lds", tok='qt')
    p(f"buffer_load_dwordx4 v8, s[{sQ}:{sQ+3}], 0 offen offset:1024 lds", tok='qt')
    p(f"s_lshl_b32 s{s_t0}, s{s_cb}, 6")
    p(f"s_lshl_b32 s{s_t1}, s{s_w}, 4")
    p(f"s_add_u32 s{s_t0}, s{s_t0}, s{s_t1}")
    p(f"v_add_u32 v9, s{s_t0}, v4")
    p("v_lshlrev_b32 v9, 12, v9")
    p("v_lshl_add_u32 v9, v5, 4, v9")
    p(f"s_lshl_b32 s{s_t1}, s{s_rb}, 7")
    p(f"s_add_u32 s{s_off}, s{s_t1}, {WS_YT}")
    p(f"s_add_u32 s{s_off+1}, s{s_off}, {8*4096}")
    p(f"buffer_load_dwordx4 v[208:211], v9, s[{sWS}:{sWS+3}], s{s_off} offen sc1")
    p(f"buffer_load_dwordx4 v[212:215], v9, s[{sWS}:{sWS+3}], s{s_off+1} offen sc1")
    p("v_lshrrev_b32 v10, 5, v1")
    p("v_lshlrev_b32 v10, 9, v10")
    p("v_and_b32 v11, 31, v1")
    p("v_lshl_add_u32 v10, v11, 2, v10")
    p(f"s_lshr_b32 s{s_t0}, s{s_rb}, 1")
    p(f"s_mul_i32 s{s_t0}, s{s_t0}, {14*1024}")
    p(f"s_and_b32 s{s_t1}, s{s_rb}, 1")
    p(f"s_lshl_b32 s{s_t1}, s{s_t1}, 8")
    p(f"s_add_u32 s{s_t0}, s{s_t0}, s{s_t1}")
    p(f"s_lshl_b32 s{s_t1}, s{s_wt}, 7")
    p(f"s_add_u32 s{s_t0}, s{s_t0}, s{s_t1}")
    p(f"s_add_u32 s{s_off+1}, s{s_t0}, {WS_ST}")
    for fs in range(14):
        p(f"s_add_u32 s{s_t2}, s{s_off+1}, {1024*fs}")
        p(f"buffer_load_dword v{216+fs}, v10, s[{sWS}:{sWS+3}], s{s_t2} offen sc1")
    p("v_bfe_u32 v11, v1, 4, 1")
    p("v_lshlrev_b32 v11, 2, v11")
    p("v_xor_b32 v11, v5, v11")
    p("v_lshlrev_b32 v11, 4, v11")
    p("v_lshl_add_u32 v11, v4, 7, v11")
    p(f"s_lshl_b32 s{s_t0}, s{s_w}, 11")
    p(f"s_add_u32 s{s_t0}, s{s_t0}, {L_YT}")
    p(f"v_add_u32 v11, s{s_t0}, v11")
    p("ds_write_b128 v11, v[208:211]", tok='fin')
    p("ds_write_b128 v11, v[212:215] offset:1024", tok='fin')
    p("s_waitcnt lgkmcnt(0)")
    p.wait('qt')
    p("s_barrier")
    p(f"s_mul_i32 s{s_t0}, s{s_w}, {3*4096}")
    p(f"v_add_u32 v12, s{s_t0}, v2")
    for slot in range(3):
        for g in range(4):
            r = 128 + 16*slot + 4*g
            p(f"ds_read_b128 v[{r}:{r+3}], v12 offset:{L_RED + 4096*slot + 1024*g}")
    for slot in range(3):
        for i in range(16):
            p(f"v_add_f32 v{192+i}, v{192+i}, v{128+16*slot+i}")
    for fs in range(1, 14):
        p(f"v_add_f32 v216, v216, v{216+fs}")
    p("v_mov_b32 v217, v216")
    p("v_permlane32_swap_b32 v216, v217")
    p(f"s_mov_b32 s{s_t0}, 0x3b124925")
    p(f"v_mul_f32 v216, s{s_t0}, v216")
    p(f"v_mul_f32 v217, s{s_t0}, v217")
    p("v_fma_f32 v217, -v216, v216, v217")
    p("v_max_f32 v217, 0, v217")
    p("v_cvt_pk_bf16_f32 v218, v216, v217")
    p("v_lshlrev_b32 v216, 16, v218")
    p("v_and_b32 v217, 0xffff0000, v218")
    p("v_add_f32 v217, 0x3727c5ac, v217")
    p("v_cvt_pk_bf16_f32 v217, v217, v217")
    p("v_lshlrev_b32 v217, 16, v217")
    p("v_sqrt_f32 v217, v217")
    p("v_cvt_pk_bf16_f32 v217, v217, v217")
    p("v_lshlrev_b32 v217, 16, v217")
    p("v_rcp_f32 v217, v217")
    p("v_mul_f32 v218, v217, v217")
    p("v_and_b32 v4, 31, v1")
    p("v_lshrrev_b32 v5, 5, v1")
    p(f"s_lshl_b32 s{s_t0}, s{s_wt}, 5")
    p(f"v_add_u32 v6, s{s_t0}, v4")
    p("v_and_b32 v9, 7, v4")
    p(f"s_lshl_b32 s{s_t1}, s{s_wf}, 2")
    p(f"v_xor_b32 v9, s{s_t1}, v9")
    p("v_lshlrev_b32 v9, 4, v9")
    p("v_lshl_add_u32 v9, v6, 7, v9")
    p("v_lshl_add_u32 v9, v5, 3, v9")
    for g in range(4):
        p(f"v_xor_b32 v10, {16*g}, v9")
        p(f"ds_read_b64 v[{128+2*g}:{128+2*g+1}], v10 offset:{L_QT}")
        p(f"v_add_u32 v{224+g}, {L_OT}, v10")
    p("v_and_b32 v4, 3, v1")
    p("v_bfe_u32 v5, v1, 2, 2")
    p("v_bfe_u32 v6, v1, 4, 1")
    p("v_lshrrev_b32 v10, 5, v1")
    p("v_lshrrev_b32 v11, 1, v5")
    p(f"v_xor_b32 v11, s{s_wt}, v11")
    p("v_lshlrev_b32 v11, 6, v11")
    p("v_lshl_add_u32 v11, v6, 5, v11")
    p("v_lshl_add_u32 v11, v4, 3, v11")
    p("v_lshl_add_u32 v11, v5, 7, v11")
    p("v_lshl_add_u32 v11, v10, 9, v11")
    p(f"s_lshl_b32 s{s_t0}, s{s_wf}, 12")
    p(f"s_add_u32 s{s_t0}, s{s_t0}, {L_YT}")
    p(f"v_add_u32 v11, s{s_t0}, v11")
    for g in range(4):
        p(f"ds_read_b64_tr_b16 v[{136+2*g}:{136+2*g+1}], v11 offset:{1024*g}")
    for g in range(4):
        for r in range(4):
            i = 4*g + r
            xq = 128 + 2*g + (r >> 1); yq = 136 + 2*g + (r >> 1)
            if r & 1:
                p(f"v_and_b32 v144, 0xffff0000, v{xq}"); p(f"v_and_b32 v145, 0xffff0000, v{yq}")
            else:
                p(f"v_lshlrev_b32 v144, 16, v{xq}"); p(f"v_lshlrev_b32 v145, 16, v{yq}")
            p("v_sub_f32 v146, v144, v216")
            p("v_mul_f32 v146, v146, v217")
            p("v_fmac_f32 v144, v146, v145")
            p(f"v_fmac_f32 v144, v218, v{192+i}")
            p(f"v_mov_b32 v{148+r}, v144")
        p(f"v_cvt_pk_bf16_f32 v{152+2*g}, v148, v149")
        p(f"v_cvt_pk_bf16_f32 v{152+2*g+1}, v150, v151")
        p(f"ds_write_b64 v{224+g}, v[{152+2*g}:{152+2*g+1}]", tok='ot')
    p.wait('ot')
    p("s_barrier")
    p(f"s_lshl_b32 s{s_t0}, s{s_w}, 11")
    p(f"s_add_u32 s{s_t0}, s{s_t0}, {L_OT}")
    p(f"v_add_u32 v4, s{s_t0}, v2")
    p("ds_read_b128 v[160:163], v4")
    p("ds_read_b128 v[164:167], v4 offset:1024")
    p("v_add_u32 v8, 1024, v8")
    p(f"buffer_store_dwordx4 v[160:163], v7, s[{sOUT}:{sOUT+3}], 0 offen")
    p(f"buffer_store_dwordx4 v[164:167], v8, s[{sOUT}:{sOUT+3}], 0 offen")

DBGSPAN = False
def span_begin(p):
    if DBGSPAN: p.raw("s_memrealtime s[100:101]")
def span_mark(p, k):
    if not DBGSPAN: return
    L = f"L_span_{k}"
    p.raw(f"s_cmp_lg_u32 s{s_w}, 0")
    p.raw(f"s_cbranch_scc1 {L}")
    p.raw(f"s_memrealtime s[{s_T}:{s_T+1}]")
    p.raw("s_waitcnt lgkmcnt(0)")
    p.raw(f"v_mov_b32 v12, s{s_T}")
    p.raw(f"v_mov_b32 v13, {4*k}")
    p.raw(f"s_mov_b64 s[98:99], exec")
    p.raw(f"s_mov_b64 exec, 1")
    p.raw(f"buffer_atomic_umax v12, v13, s[{sDBG}:{sDBG+3}], 0 offen sc1")
    if k == 2:
        p.raw("s_not_b32 s96, s100")
        p.raw("v_mov_b32 v12, s96")
        p.raw("v_mov_b32 v13, 4")
        p.raw(f"buffer_atomic_umax v12, v13, s[{sDBG}:{sDBG+3}], 0 offen sc1")
    p.raw(f"s_mov_b64 exec, s[98:99]")
    p.raw(f"{L}:")
    p("s_nop 0")

def build(stamps=False, stop_after=None):
    global STAMPS
    STAMPS = stamps
    p = Prog()
    span_begin(p)
    prologue(p)
    stamp(p, 0)
    phase0(p)
    get_nonce(p, "a")
    p(f"s_lshl_b32 s{s_t0}, s{s_cb}, 8")
    p(f"s_lshl_b32 s{s_t1}, s{s_rb}, 2")
    p(f"s_add_u32 s{s_t0}, s{s_t0}, s{s_t1}")
    p(f"s_add_u32 s{s_t3}, s{s_t0}, {WS_F0}")
    post_flag(p, s_t3, "kv")
    stamp(p, 1)
    gemm1(p)
    stamp(p, 4)
    conv(p)
    stamp(p, 7)
    gemm2(p)
    final(p)
    p("s_waitcnt vmcnt(0)")
    span_mark(p, 2)
    stamp(p, 9)
    p("L_end:")
    p("s_endpgm")
    return p

HEADER_COMMENT = open("parallel_sum__ssm_conv_h3__glu_gated_reglu__prompt.s.ref").read().split("; Override launch")[0]

def emit(p, path):
    hdr = f'.amdgcn_target "amdgcn-amd-amdhsa--gfx950"\n.text\n.globl {KNAME}\n.p2align 8\n.type {KNAME},@function\n{KNAME}:\n'
    ins = finalize(p, hdr, "tmp_sz")
    body = '\n'.join(('    ' + i.text) if is_code(i) else i.text for i in ins if i.kind != 'pwait')
    txt = HEADER_COMMENT
    txt += f"; @launch grid=({NWG},1,1) block=(256,1,1) lds={LDS_BYTES}\n"
    txt += hdr + body + "\n"
    txt += f""".section .rodata,"a"
.p2align 6
.amdhsa_kernel {KNAME}
  .amdhsa_next_free_vgpr 512
  .amdhsa_next_free_sgpr 102
  .amdhsa_accum_offset 256
  .amdhsa_group_segment_fixed_size 0
  .amdhsa_kernarg_size 104
  .amdhsa_user_sgpr_count 2
  .amdhsa_user_sgpr_kernarg_segment_ptr 1
  .amdhsa_system_sgpr_workgroup_id_x 1
.end_amdhsa_kernel
"""
    open(path, "w").write(txt)

if __name__ == "__main__":
    out = sys.argv[1]
    stamps = len(sys.argv) > 2 and sys.argv[2] == "stamps"
    DBGSPAN = len(sys.argv) > 2 and sys.argv[2] == "span"
    emit(build(stamps), out)
```

```python
import re, subprocess, os, sys

REG_RE = re.compile(r'^(-?)(abs\()?([vas])(?:(\d+)|\[(\d+):(\d+)\])\)?$')

def regs_of(tok):
    tok = tok.strip()
    neg = tok.lstrip('-')
    if neg.startswith('|') and neg.endswith('|'): neg = neg[1:-1]
    m = re.match(r'^([vas])(?:(\d+)|\[(\d+):(\d+)\])$', neg)
    if m:
        f = m.group(1)
        if m.group(2) is not None:
            return [(f, int(m.group(2)))]
        return [(f, r) for r in range(int(m.group(3)), int(m.group(4)) + 1)]
    if neg == 'vcc': return [('s', 106), ('s', 107)]
    if neg == 'vcc_lo': return [('s', 106)]
    if neg == 'vcc_hi': return [('s', 107)]
    if neg == 'm0': return [('s', 124)]
    if neg == 'exec': return [('s', 126), ('s', 127)]
    if neg == 'scc': return [('s', 200)]
    return []

TRANS = ('v_exp_f32', 'v_log_f32', 'v_rcp_f32', 'v_rsq_f32', 'v_sqrt_f32', 'v_sin_f32', 'v_cos_f32', 'v_rcp_iflag_f32')

class Ins:
    __slots__ = ('text', 'op', 'kind', 'rd', 'wr', 'size', 'tok', 'need', 'cost', 'tag', 'srcC', 'raw')
    def __init__(self, text, tok=None, need=None, tag=None):
        self.text = text.strip()
        self.tok = tok
        self.need = need
        self.tag = tag
        self.size = None
        self.srcC = []
        self.raw = False
        self.parse()
    def parse(self):
        t = self.text
        self.rd, self.wr = set(), set()
        if t.endswith(':') or t.startswith('.') or t.startswith(';') or t == '':
            self.op, self.kind = '', 'label' if t.endswith(':') else 'dir'
            return
        parts = t.split(None, 1)
        op = parts[0]; self.op = op
        rest = parts[1] if len(parts) > 1 else ''
        rest = rest.split(';')[0]
        ops = [o.strip() for o in rest.split(',')] if rest.strip() else []
        mods = ''
        if ops:
            last = ops[-1].split(None, 1)
            if last:
                ops[-1] = last[0]
                mods = last[1] if len(last) > 1 else ''
        R = regs_of
        base = re.sub(r'_(e32|e64|dpp|sdwa)$', '', op)
        if op.startswith('v_mfma'):
            self.kind = 'mfma'
            self.wr.update(R(ops[0]))
            for o in ops[1:4]: self.rd.update(R(o))
            self.srcC = R(ops[3])
        elif op.startswith('ds_'):
            self.kind = 'ds'
            if op.startswith('ds_read') or op.startswith('ds_bpermute') or op.startswith('ds_swizzle'):
                self.wr.update(R(ops[0]))
                for o in ops[1:]: self.rd.update(R(o))
            else:
                for o in ops: self.rd.update(R(o))
        elif op.startswith('buffer_') or op.startswith('global_'):
            self.kind = 'vm'
            islds = ' lds' in (' ' + mods) or op.startswith('global_load_lds')
            if op in ('buffer_wbl2', 'buffer_inv'):
                pass
            elif 'load' in op and not islds:
                self.wr.update(R(ops[0]))
                for o in ops[1:]: self.rd.update(R(o))
            elif islds:
                for o in ops: self.rd.update(R(o))
                self.rd.add(('s', 124))
            else:
                for o in ops: self.rd.update(R(o))
                if 'atomic' in op and 'sc0' in mods: self.wr.update(R(ops[0]))
        elif op.startswith('s_'):
            if op in ('s_waitcnt', 's_nop', 's_barrier', 's_endpgm', 's_sleep', 's_setprio', 's_branch'):
                self.kind = {'s_waitcnt': 'wait', 's_nop': 'nop', 's_barrier': 'barrier'}.get(op, 'salu')
            elif op.startswith('s_cbranch'):
                self.kind = 'salu'
                if 'scc' in op: self.rd.add(('s', 200))
                if 'vcc' in op: self.rd.update(R('vcc'))
                if 'exec' in op: self.rd.update(R('exec'))
            elif op.startswith('s_load') or op.startswith('s_memrealtime') or op.startswith('s_memtime'):
                self.kind = 'smem'
                self.wr.update(R(ops[0]))
                for o in ops[1:]: self.rd.update(R(o))
            elif op.startswith('s_cmp') or op.startswith('s_bitcmp'):
                self.kind = 'salu'
                for o in ops: self.rd.update(R(o))
                self.wr.add(('s', 200))
            else:
                self.kind = 'salu'
                self.wr.update(R(ops[0]))
                for o in ops[1:]: self.rd.update(R(o))
                if op.startswith('s_cselect') or op.startswith('s_addc') or op.startswith('s_subb'): self.rd.add(('s', 200))
                if 'saveexec' in op:
                    self.rd.update(R('exec')); self.wr.update(R('exec'))
                if not (op.startswith('s_mov') or op.startswith('s_cselect') or op.startswith('s_getreg') or op.startswith('s_getpc') or op.startswith('s_mul')):
                    self.wr.add(('s', 200))
                if op in ('s_addk_i32', 's_mulk_i32'): self.rd.update(R(ops[0]))
        elif op.startswith('v_'):
            self.kind = 'valu'
            if base.startswith('v_cmp'):
                self.wr.update(R(ops[0]))
                for o in ops[1:]: self.rd.update(R(o))
            elif base.startswith('v_permlane'):
                for o in ops[:2]:
                    self.rd.update(R(o)); self.wr.update(R(o))
            elif base in ('v_add_co_u32', 'v_sub_co_u32', 'v_addc_co_u32', 'v_subb_co_u32'):
                self.wr.update(R(ops[0])); self.wr.update(R(ops[1]))
                for o in ops[2:]: self.rd.update(R(o))
            else:
                self.wr.update(R(ops[0]))
                for o in ops[1:]: self.rd.update(R(o))
                if base in ('v_fmac_f32', 'v_dot2c_f32_bf16', 'v_writelane_b32'): self.rd.update(R(ops[0]))
                if base == 'v_cndmask_b32' and len(ops) == 3: self.rd.update(R('vcc'))
                if 'dpp' in op or 'row_' in mods or 'quad_perm' in mods or 'wave_' in mods:
                    self.rd.update(R(ops[0]))
        else:
            raise ValueError("unknown instruction: " + t)
    def passes(self):
        return 8 if '32x32' in self.op else 4
    def __repr__(self):
        return self.text

class Prog:
    def __init__(self):
        self.ins = []
    def __call__(self, text, tok=None, need=None, tag=None):
        out = []
        for l in text.split('\n'):
            l = l.strip()
            if not l: continue
            i = Ins(l, tok=tok, need=need, tag=tag)
            self.ins.append(i); out.append(i)
        return out
    def raw(self, text):
        out = self(text)
        for i in out: i.raw = True
        return out
    def add(self, lst):
        self.ins.extend(lst)
    def wait(self, *toks):
        i = Ins('; wait ' + ' '.join(map(str, toks)))
        i.kind = 'pwait'; i.need = list(toks)
        self.ins.append(i)
        return i

def is_code(i):
    return i.kind not in ('label', 'dir', 'pwait')

def insert_waits(ins):
    out = []
    vm, lg = [], []
    def need_count(q, pred):
        idx = None
        for k, o in enumerate(q):
            if pred(o): idx = k
        if idx is None: return None
        return len(q) - 1 - idx
    for i in ins:
        if i.kind in ('label', 'dir') or i.raw:
            out.append(i); continue
        touched = (i.rd | i.wr) if is_code(i) else set()
        toks = set(i.need or [])
        nv = need_count(vm, lambda o: (o['regs'] & touched) or (o['tok'] in toks and o['tok'] is not None))
        nl = need_count(lg, lambda o: (o['regs'] & touched) or (o['tok'] in toks and o['tok'] is not None))
        if nl is not None and any(o.get('smem') for o in lg): nl = 0
        w = []
        if nv is not None:
            if nv < 63: w.append(f'vmcnt({nv})')
            vm = vm[len(vm) - nv:] if nv > 0 else []
        if nl is not None:
            if nl < 15: w.append(f'lgkmcnt({nl})')
            lg = lg[len(lg) - nl:] if nl > 0 else []
        if w:
            out.append(Ins('s_waitcnt ' + ' '.join(w)))
        if i.kind == 'pwait':
            continue
        if i.kind == 'wait':
            m = re.search(r'vmcnt\((\d+)\)', i.text)
            if m:
                n = int(m.group(1)); vm = vm[len(vm) - n:] if 0 < n < len(vm) else ([] if n == 0 else vm)
            m = re.search(r'lgkmcnt\((\d+)\)', i.text)
            if m:
                n = int(m.group(1)); lg = lg[len(lg) - n:] if 0 < n < len(lg) else ([] if n == 0 else lg)
        out.append(i)
        if i.kind == 'vm':
            vm.append(dict(regs=set(i.wr), tok=i.tok))
            if len(vm) > 63: vm = vm[-63:]
        elif i.kind == 'ds':
            lg.append(dict(regs=set(i.wr), tok=i.tok))
            if len(lg) > 15: lg = lg[-15:]
        elif i.kind == 'smem':
            lg.append(dict(regs=set(i.wr), tok=i.tok, smem=True))
    return out

def states(i):
    if i.kind == 'nop':
        return int(i.text.split()[1]) + 1
    return 1

def isv(r): return r[0] in 'va'

def insert_hazard_nops(ins, verbose=False):
    out = []
    hist = []
    nins = 0
    for i in ins:
        if not is_code(i):
            out.append(i); continue
        need = 0
        dist = 0
        for p in reversed(hist):
            if dist > 24: break
            req = 0
            pw = p.wr;
            if p.kind == 'mfma':
                big = p.passes() == 8
                ov_w = pw & (i.rd | i.wr)
                if ov_w:
                    if i.kind == 'mfma':
                        c = set(i.srcC)
                        ab = i.rd - c if not (set(i.srcC) & (i.rd - c)) else i.rd
                        ops = i.text.split(None, 1)[1].split(',')
                        A = set(regs_of(ops[1])) | set(regs_of(ops[2]))
                        if pw & A: req = max(req, 12 if big else 8)
                        if pw & c:
                            if not (pw == c and p.passes() == i.passes()): req = max(req, 10 if big else 6)
                        if (pw & i.wr) and not (pw & c):
                            req = max(req, 12 if big else 8)
                    else:
                        req = max(req, 12 if big else 8)
                if i.kind == 'valu' and (set(p.srcC) & i.wr):
                    req = max(req, 7 if big else 3)
            elif p.kind == 'valu':
                vw = {r for r in pw if isv(r)}
                sw = {r for r in pw if r[0] == 's'}
                if i.kind == 'mfma' and (vw & i.rd): req = max(req, 2)
                if i.kind == 'valu':
                    if i.op.startswith('v_permlane') and (vw & (i.rd | i.wr)): req = max(req, 2)
                    if (i.op.startswith('v_readfirstlane') or i.op.startswith('v_readlane')) and (vw & i.rd): req = max(req, 1)
                    if ('dpp' in i.text or 'row_' in i.text) and (vw & i.rd): req = max(req, 2)
                    if re.sub(r'_(e32|e64)$', '', p.op) in TRANS and (vw & i.rd): req = max(req, 1)
                    if sw & i.rd: req = max(req, 2)
                    if (i.op.startswith('v_readlane') or i.op.startswith('v_writelane')) and (sw & i.rd): req = max(req, 4)
                if i.kind == 'vm' and (sw & i.rd): req = max(req, 5)
                if i.kind in ('salu', 'smem') and (sw & i.rd): req = max(req, 4)
                if i.kind == 'mfma' and (('s', 126) in pw): req = max(req, 4)
            elif p.kind == 'salu':
                if ('s', 124) in pw and i.kind == 'vm' and ('s', 124) in i.rd: req = max(req, 1)
            elif p.kind == 'vm':
                if ('store_dwordx4' in p.op or 'store_dwordx3' in p.op):
                    if (i.kind == 'valu' and (p.rd & i.wr & {r for r in p.rd if isv(r)})): req = max(req, 2)
                    elif (p.rd & i.wr & {r for r in p.rd if isv(r)}): req = max(req, 1)
            if req > dist: need = max(need, req - dist)
            dist += states(p)
        while need > 0:
            n = min(need, 16)
            nop = Ins(f's_nop {n-1}')
            out.append(nop); hist.append(nop); need -= n; nins += 1
        out.append(i); hist.append(i)
        if len(hist) > 40: hist = hist[-40:]
    if verbose: print("hazard nops inserted:", nins, file=sys.stderr)
    return out

PROMOTABLE = re.compile(r'^v_(mov_b32|add_f32|sub_f32|subrev_f32|mul_f32|max_f32|min_f32|add_u32|sub_u32|subrev_u32|and_b32|or_b32|xor_b32|lshlrev_b32|lshrrev_b32|ashrrev_i32|cvt_f32_u32|cvt_f32_i32|cvt_u32_f32|rcp_f32|rsq_f32|sqrt_f32|mul_u32_u24|accvgpr_read_b32|accvgpr_write_b32|max_u32|min_u32|max_i32|min_i32|fmac_f32|cndmask_b32)$')

def measure_sizes(ins, header, tmpbase):
    src = header + '\n'.join(i.text for i in ins if i.kind != 'pwait') + '\n'
    open(tmpbase + '.s', 'w').write(src)
    r = subprocess.run(['clang', '-x', 'assembler', '-target', 'amdgcn-amd-amdhsa', '-mcpu=gfx950', '-c', tmpbase + '.s', '-o', tmpbase + '.o'], capture_output=True, text=True)
    if r.returncode: raise RuntimeError(r.stderr[:4000])
    d = subprocess.run(['llvm-objdump', '-d', '--mcpu=gfx950', tmpbase + '.o'], capture_output=True, text=True).stdout
    sizes = []
    for l in d.split('\n'):
        m = re.search(r'//\s+([0-9A-Fa-f]{12}):((?:\s[0-9A-Fa-f]{8})+)', l)
        if m: sizes.append(4 * len(m.group(2).split()))
    code = [i for i in ins if is_code(i)]
    assert len(code) == len(sizes), (len(code), len(sizes))
    for i, s in zip(code, sizes): i.size = s

def align8(ins, pad=True):
    out = []
    off = 0
    last_prom = None
    npad = nprom = nmis = 0
    code_idx = [k for k, i in enumerate(ins) if is_code(i)]
    nopad = not pad
    for k, i in enumerate(ins):
        if i.kind == 'dir' and i.text.startswith(';@nopad'):
            nopad = True; out.append(i); continue
        if i.kind == 'dir' and i.text.startswith(';@pad'):
            nopad = not pad; out.append(i); continue
        if i.kind == 'dir' and i.text.startswith('.p2align'):
            off = 0; last_prom = None; out.append(i); continue
        if not is_code(i):
            out.append(i); continue
        if i.size == 8 and off % 8 == 4:
            if last_prom is not None:
                p = out[last_prom]
                parts = p.text.split(None, 1)
                p.text = parts[0] + '_e64 ' + parts[1]; p.size = 8; nprom += 1
                off += 4
            elif not nopad:
                n = Ins('s_nop 0'); n.size = 4; out.append(n); npad += 1
                off += 4
            else:
                nmis += 1
            last_prom = None
        out.append(i)
        if i.size == 4 and i.kind == 'valu' and PROMOTABLE.match(i.op):
            last_prom = len(out) - 1
        off += i.size
    return out, nprom, npad, nmis

def check_tokens(ins):
    last_prod = {}
    for k, i in enumerate(ins):
        if i.tok is not None: last_prod[i.tok] = k
    last_wait = {}
    for k, i in enumerate(ins):
        for t in (i.need or []): last_wait[t] = k
    first_wait = {}
    for k, i in enumerate(ins):
        for t in (i.need or []): first_wait.setdefault(t, k)
    for t, k in first_wait.items():
        if t not in last_prod:
            if os.environ.get("LAX"): continue
            raise RuntimeError(f"token {t} waited but never produced")
        if last_prod[t] > k: raise RuntimeError(f"token {t} produced (pos {last_prod[t]}) after its first wait (pos {k})")

def finalize(prog, header, tmpbase, do_align=True, verbose=True, pad=True):
    check_tokens(prog.ins)
    ins = insert_waits(prog.ins)
    ins = insert_hazard_nops(ins, verbose)
    if do_align:
        measure_sizes(ins, header, tmpbase)
        ins, a, b, c = align8(ins, pad)
        if verbose: print(f"align: promoted {a}, padded {b}, misaligned {c}; code bytes", sum(i.size for i in ins if is_code(i)), file=sys.stderr)
    return ins

def vm_cost(i):
    if 'dwordx4' in i.op: return 64
    if 'dwordx2' in i.op: return 32
    return 16

def weave(main, queues, slots, name='', pace=1.0):
    out = []
    pos = [0] * len(queues)
    nm = 0
    j = 0
    n = len(main)
    t = 0
    ta_free = -10**9
    def note_vm(i):
        nonlocal ta_free
        ta_free = max(ta_free, t) + vm_cost(i) * pace
    while j < n:
        i = main[j]; out.append(i); j += 1
        if i.kind == 'vm': note_vm(i)
        if i.kind == 'mfma':
            nm += 1
            own = 0
            k = j
            while k < n and main[k].kind != 'mfma':
                if is_code(main[k]) or main[k].kind == 'pwait': own += 1
                k += 1
            if k < n and main[k].need: own += 1
            free = slots(i) - own
            dur = 32 if '32x32' in i.op else 16
            while j < k:
                if main[j].kind == 'vm': note_vm(main[j])
                out.append(main[j]); j += 1
            def head(q):
                Q = queues[q]
                while pos[q] < len(Q) and not is_code(Q[pos[q]]) and Q[pos[q]].kind != 'pwait':
                    g = Q[pos[q]]
                    if isinstance(g.tag, tuple) and g.tag[0] == 'after' and nm < g.tag[1]: return None
                    out.append(g); pos[q] += 1
                h = pos[q]
                while h < len(Q) and Q[h].kind == 'pwait': h += 1
                return Q[h] if h < len(Q) else None
            while free > 0:
                heads = [head(q) for q in range(len(queues))]
                pick = None
                if ta_free <= t + dur // 2:
                    for q in reversed(range(len(queues))):
                        if heads[q] is not None and heads[q].kind == 'vm': pick = q; break
                if pick is None:
                    for q in range(len(queues)):
                        if heads[q] is not None and heads[q].kind != 'vm': pick = q; break
                if pick is None: break
                Q = queues[pick]
                while True:
                    g = Q[pos[pick]]; out.append(g); pos[pick] += 1
                    if is_code(g) or g.kind == 'pwait': free -= 1
                    if g.kind == 'vm': note_vm(g)
                    if (g.tag == 'glue' or g.kind == 'pwait' or not is_code(g)) and pos[pick] < len(Q): continue
                    break
            t += dur
    left = [queues[q][pos[q]:] for q in range(len(queues))]
    if name:
        print(f"weave {name}: mfma {nm}, est cycles {t}, leftovers {[len(l) for l in left]}", file=sys.stderr)
    return out, left

def interleave(a, b, ratio):
    out = []; j = 0
    for i in a:
        out.append(i)
        if i.kind == 'vm':
            c = 0
            while j < len(b) and c < ratio:
                out.append(b[j]); j += 1
                if is_code(b[j-1]): c += 1
    out.extend(b[j:])
    return out
```

```python
import sys
from fw import *

KNAME = "parallel_sum__ssm_conv_h3__glu_gated_reglu__prompt_kernel"
NWG = 224
S, D, F = 2048, 448, 1792
OPT = dict(stamps=False, pad=False, prefetch_code=True)

WS_F0 = 0x0
WS_F1 = 0x1000
WS_F2 = 0x4000
WS_STAMP = 0x10000
WS_KVR = 0x100000
WS_YT = 0x300000
WS_ST = 0x500000
WS_H = 0x600000
WS_BYTES = 0x1000000

XSLOT = lambda k: 16384 * k
WSLOT = lambda k: 65536 + 16384 * k
L_PK = 131072
L_PW = L_PK + 9216
L_PV = L_PW + 1024
L_KT = L_PV + 8192
L_M = L_KT + 8192
L_C = L_M + 512
L_H = 0; HSTR = 4160; HCH = 4 * HSTR
L_XR = 2 * HCH; XRSTR = 4608
L_CRED = 0
L_WD = 49152
L_RED = 0
LDS_BYTES = 163840

sQ, sK, sV, sSK, sSSM, sWW, sWD, sOUT, sWS, sDBG, sSD = 4, 8, 12, 16, 20, 24, 28, 32, 36, 40, 44
P = 48
s_c, s_cw, s_h0, s_a16, s_wda = 48, 55, 62, 64, 71
s_w, s_wt, s_wf, s_rbk, s_fs, s_rb, s_cb, s_nonce = 78, 79, 80, 81, 82, 83, 84, 85
s_t0, s_t1, s_t2, s_t3 = 86, 87, 88, 89
s_w4k, s_oD, s_oE, s_oF = 90, 91, 92, 93
s_T = 94
sCODE = 96
s_cnt = 100
s_t4 = 101
s_msk = 3
sP0 = 96

vLANE, vL16, vONE = 1, 2, 3
vST = 15
vXD, vWDm, vXR, vA0, vA1 = 16, 20, 24, 32, 36
vSEL, vMS, vCG, vCU = 40, 44, 48, 52
vcg, vcu, vm = 56, 72, 88
vNON, vP0, vP1, vP2, vP3 = 90, 91, 92, 93, 94
vPK = 96
vWDD, vWR, vHL = 112, 120, 124
ACC = lambda bank, mat, n: 128 + 64*bank + 32*mat + 16*n
XF = lambda g, n: (g*2 + n) * 4
AF = lambda buf, mat: 224 + 8*buf + 4*mat
WDF = lambda a, j, dt: ((2*a + j)*2 + dt) * 4
HF = lambda a, j, n: 112 + ((2*a + j)*2 + n) * 4

slow_paths = []

def L(fn, *a, **k):
    p = Prog(); fn(p, *a, **k); return p.ins

def tag_after(ins, k):
    m = Ins(f"; gate {k}"); m.tag = ('after', k)
    return [m] + ins

def srd(p, r, ptr, nbytes):
    p(f"s_mov_b32 s{r}, s{ptr}")
    p(f"s_and_b32 s{r+1}, s{ptr+1}, 0xffff")
    p(f"s_mov_b32 s{r+2}, {nbytes}")
    p(f"s_mov_b32 s{r+3}, 0x20000")

def stamp(p, k):
    if not OPT['stamps']: return
    p.raw(f"s_memrealtime s[{s_T}:{s_T+1}]")
    p("s_waitcnt lgkmcnt(0)")
    p.raw(f"v_writelane_b32 v{vST}, s{s_T}, {k}")
    if OPT.get('cyc'):
        p.raw(f"s_memtime s[{s_T}:{s_T+1}]")
        p("s_waitcnt lgkmcnt(0)")
        p.raw(f"v_writelane_b32 v{vST}, s{s_T}, {32+k}")

def stamps_out(p):
    if not OPT['stamps']: return
    p(f"s_cmp_lg_u32 s{s_w}, 0")
    p("s_cbranch_scc1 L_nostamp")
    p.raw(f"s_lshl_b32 s{s_t0}, s2, 8")
    p.raw(f"s_add_u32 s{s_t0}, s{s_t0}, {WS_STAMP}")
    p.raw("v_lshlrev_b32 v4, 2, v1")
    p.raw("v_cmp_gt_u32 vcc, 64, v1")
    p.raw("s_nop 1")
    p.raw("v_mov_b32 v5, 0x7ffffff0")
    p.raw("v_cndmask_b32 v4, v5, v4, vcc")
    p.raw(f"buffer_store_dword v{vST}, v4, s[{sWS}:{sWS+3}], s{s_t0} offen")
    p("L_nostamp:")

def flag_post(p, sreg, need):
    p.wait(*need)
    p(f"v_mov_b32 v5, s{s_nonce}")
    p(f"buffer_store_dword v5, v{vONE}, s[{sWS}:{sWS+3}], s{sreg} offen sc1")

def poll_issue(p, vdst, vaddr, sreg):
    p(f"buffer_load_dword v{vdst}, v{vaddr}, s[{sWS}:{sWS+3}], s{sreg} offen sc1")

def poll_check(p, vdst, vaddr, sreg, tag):
    i = p(f"v_cmp_ne_u32 vcc, s{s_nonce}, v{vdst}"); i[0].tag = 'glue'
    i = p("s_nop 3"); i[0].tag = 'glue'
    i = p("s_cmp_lg_u64 vcc, 0"); i[0].tag = 'glue'
    i = p(f"s_cbranch_scc1 L_slow_{tag}"); i[0].tag = 'glue'
    p(f"L_back_{tag}:")
    q = Prog()
    q.raw(f"L_slow_{tag}:")
    q.raw(f"s_mov_b32 s{s_cnt}, 0")
    q.raw(f"L_spin_{tag}:")
    q.raw(f"buffer_load_dword v{vdst}, v{vaddr}, s[{sWS}:{sWS+3}], s{sreg} offen sc1")
    q.raw(f"s_add_u32 s{s_cnt}, s{s_cnt}, 1")
    q.raw("s_waitcnt vmcnt(0)")
    q.raw(f"v_cmp_ne_u32 vcc, s{s_nonce}, v{vdst}")
    q.raw(f"s_cmp_gt_u32 s{s_cnt}, 200000")
    q.raw(f"s_cbranch_scc1 L_back_{tag}")
    q.raw("s_nop 1")
    q.raw("s_cmp_lg_u64 vcc, 0")
    q.raw(f"s_cbranch_scc1 L_spin_{tag}")
    q.raw(f"s_branch L_back_{tag}")
    slow_paths.extend(q.ins)

def nonce_get(p):
    i = p(f"v_readfirstlane_b32 s{s_nonce}, v{vNON}"); i[0].tag = 'glue'
    i = p("s_nop 3"); i[0].tag = 'glue'
    i = p(f"s_cmp_eq_u32 s{s_nonce}, 0"); i[0].tag = 'glue'
    i = p("s_cbranch_scc1 L_slow_nonce"); i[0].tag = 'glue'
    p("L_back_nonce:")
    q = Prog()
    q.raw("L_slow_nonce:")
    q.raw(f"s_mov_b32 s{s_cnt}, 0")
    q.raw("v_mov_b32 v5, 0")
    q.raw("L_spin_nonce:")
    q.raw(f"buffer_load_dword v{vNON}, v5, s[{sDBG}:{sDBG+3}], 0 offen sc1")
    q.raw(f"s_add_u32 s{s_cnt}, s{s_cnt}, 1")
    q.raw("s_waitcnt vmcnt(0)")
    q.raw(f"v_readfirstlane_b32 s{s_nonce}, v{vNON}")
    q.raw(f"s_cmp_gt_u32 s{s_cnt}, 200000")
    q.raw("s_cbranch_scc1 L_back_nonce")
    q.raw(f"s_cmp_eq_u32 s{s_nonce}, 0")
    q.raw("s_cbranch_scc1 L_spin_nonce")
    q.raw("s_branch L_back_nonce")
    slow_paths.extend(q.ins)

def dma_x(p, c, slot):
    p(f"s_add_u32 m0, s{s_w4k}, {XSLOT(slot)}")
    for j in range(4):
        p(f"buffer_load_dwordx4 v{vXD+j}, s[{sQ}:{sQ+3}], s{s_c+c} offen offset:{1024*j} lds", tok=f"x{c}")

def dma_w(p, pas, c, lds):
    p(f"s_add_u32 m0, s{s_w4k}, {lds}")
    if pas == 0:
        so = s_cw + c
    else:
        p(f"s_add_u32 s{s_oD}, s{s_cw+c}, 128")
        so = s_oD
    for j in range(4):
        p(f"buffer_load_dwordx4 v{vWDm+j}, s[{sWW}:{sWW+3}], s{so} offen offset:{1024*j} lds", tok=f"w{pas}{c}")

def dma_wd(p, pas, a):
    p(f"s_add_u32 m0, s{s_w4k}, {L_WD + 16384*a}")
    for j in range(4):
        so = f"s{s_wda+a}" if a else "0"
        p(f"buffer_load_dwordx4 v{vWDD+4*pas+j}, s[{sWD}:{sWD+3}], {so} offen offset:{1024*j} lds", tok=f"wd{pas}{a}")

P2SLOT = [WSLOT(3), XSLOT(3), WSLOT(0), XSLOT(0), WSLOT(1), XSLOT(1), WSLOT(2)]

def rot_entry(p, c):
    p(f"s_add_u32 s{s_t1}, s{s_t0}, {c}")
    p(f"s_cmp_ge_u32 s{s_t1}, 7")
    p(f"s_cselect_b32 s{s_t2}, 7, 0")
    p(f"s_sub_u32 s{s_t1}, s{s_t1}, s{s_t2}")
    p(f"s_lshl_b32 s{s_c+c}, s{s_t1}, 7")
    p(f"s_mul_i32 s{s_cw+c}, s{s_t1}, 229376")

T0 = 192
p0_k = [T0 + 4*j for j in range(5)]
p0_v = [T0 + 20, T0 + 24]
p0_w = T0 + 28
p0_t = T0 + 44
p0_kw, p0_kr0, p0_kr1, p0_st, p0_ka, p0_wa = 251, 252, 253, 254, 255, 12

def prologue(p):
    p(f"s_cmp_ge_u32 s2, {NWG}")
    p("s_cbranch_scc1 L_end")
    p(f"s_load_dwordx16 s[{P}:{P+15}], s[0:1], 0")
    p(f"s_load_dwordx8 s[{P+16}:{P+23}], s[0:1], 64")
    p(f"s_load_dwordx2 s[{P+24}:{P+25}], s[0:1], 96")
    if OPT['stamps']:
        p.raw(f"s_memrealtime s[{s_T}:{s_T+1}]")
    if OPT['prefetch_code']:
        p(f"s_getpc_b64 s[{sCODE}:{sCODE+1}]")
        p("L_pc:")
        p(f"s_and_b32 s{sCODE+1}, s{sCODE+1}, 0xffff")
        p(f"s_mov_b32 s{sCODE+2}, L_code_end-L_pc")
        p(f"s_mov_b32 s{sCODE+3}, 0x20000")
        p("v_lshlrev_b32 v4, 7, v0")
        p(f"buffer_load_dword v95, v4, s[{sCODE}:{sCODE+3}], 0 offen")
    p("v_lshrrev_b32 v4, 6, v0")
    p("v_and_b32 v1, 63, v0")
    p(f"v_readfirstlane_b32 s{s_w}, v4")
    p("v_lshlrev_b32 v2, 4, v1")
    p(f"s_and_b32 s{s_t2}, s2, 7")
    p(f"s_lshr_b32 s{s_t3}, s2, 3")
    p(f"s_mul_i32 s{s_t0}, s{s_t3}, 37")
    p(f"s_lshr_b32 s{s_t0}, s{s_t0}, 8")
    p(f"s_mul_i32 s{s_t1}, s{s_t0}, 7")
    p(f"s_sub_u32 s{s_cb}, s{s_t3}, s{s_t1}")
    p(f"s_lshl_b32 s{s_rb}, s{s_t2}, 2")
    p(f"s_add_u32 s{s_rb}, s{s_rb}, s{s_t0}")
    p(f"s_lshr_b32 s{s_t1}, s{s_t2}, 1")
    p(f"s_lshl_b32 s{s_t1}, s{s_t1}, 2")
    p(f"s_add_u32 s{s_rbk}, s{s_t1}, s{s_t0}")
    p(f"s_and_b32 s{s_t1}, s{s_t2}, 1")
    p(f"s_mul_i32 s{s_t1}, s{s_t1}, 7")
    p(f"s_add_u32 s{s_fs}, s{s_t1}, s{s_cb}")
    p(f"s_and_b32 s{s_wt}, s{s_w}, 1")
    p(f"s_lshr_b32 s{s_wf}, s{s_w}, 1")
    p(f"s_lshl_b32 s{s_w4k}, s{s_w}, 12")
    p(f"s_mov_b32 s{s_msk}, 0xffff0000")
    p("v_lshrrev_b32 v4, 3, v1")
    p("v_and_b32 v5, 7, v1")
    p("v_lshrrev_b32 v6, 4, v1")
    p("v_xor_b32 v7, v5, v6")
    p("v_lshlrev_b32 v7, 4, v7")
    p(f"s_lshl_b32 s{s_t0}, s{s_rbk}, 7")
    p(f"s_lshl_b32 s{s_t1}, s{s_w}, 5")
    p(f"s_add_u32 s{s_t0}, s{s_t0}, s{s_t1}")
    p(f"v_add_u32 v8, s{s_t0}, v4")
    p("v_mul_u32_u24 v8, 896, v8")
    p(f"v_add_u32 v{vXD}, v8, v7")
    p(f"v_add_u32 v{vXD+2}, {2*6144}, v{vXD}")
    p(f"v_xor_b32 v{vXD+1}, 64, v{vXD}")
    p(f"v_add_u32 v{vXD+3}, {3*6144}, v{vXD+1}")
    p(f"v_add_u32 v{vXD+1}, {6144}, v{vXD+1}")
    p("v_and_b32 v7, 1, v6")
    p("v_lshlrev_b32 v7, 2, v7")
    p("v_xor_b32 v7, v5, v7")
    p("v_lshlrev_b32 v7, 4, v7")
    p(f"s_lshl_b32 s{s_t0}, s{s_wt}, 5")
    p(f"v_add_u32 v8, s{s_t0}, v4")
    p("v_mul_u32_u24 v8, 3584, v8")
    p(f"s_lshl_b32 s{s_t1}, s{s_fs}, 8")
    p(f"v_add3_u32 v{vWDm}, v8, v7, s{s_t1}")
    for j in range(1, 4):
        p(f"v_add_u32 v{vWDm+j}, {j*(8*3584-1024)}, v{vWDm}")
    p(f"s_lshr_b32 s{s_t0}, s{s_fs}, 1")
    p("s_waitcnt lgkmcnt(0)")
    if OPT['stamps']:
        p(f"v_mov_b32 v{vST}, 0")
        p.raw(f"v_writelane_b32 v{vST}, s{s_T}, 0")
    ptr = lambda n: P + 2 * n
    srd(p, sQ, ptr(0), S*D*2)
    p(f"s_cmp_eq_u32 s{s_wf}, 0")
    p(f"s_cselect_b32 s{sWW}, s{ptr(7)}, s{ptr(8)}")
    p(f"s_cselect_b32 s{sWW+1}, s{ptr(7)+1}, s{ptr(8)+1}")
    p(f"s_and_b32 s{sWW+1}, s{sWW+1}, 0xffff")
    p(f"s_mov_b32 s{sWW+2}, {D*F*2}")
    p(f"s_mov_b32 s{sWW+3}, 0x20000")
    q_ = Prog()
    srd(q_, sK, ptr(1), S*D*2); srd(q_, sV, ptr(2), S*D*2); srd(q_, sSK, ptr(3), D*4*2)
    srd(q_, sSSM, ptr(4), S*D*2); srd(q_, sSD, ptr(5), D*2)
    q_(f"s_cmp_eq_u32 s{s_wt}, 0")
    q_(f"s_cselect_b32 s{sP0}, s{ptr(1)}, s{ptr(3)}")
    q_(f"s_cselect_b32 s{sP0+1}, s{ptr(1)+1}, s{ptr(3)+1}")
    q_(f"s_mov_b32 s{sP0+2}, {D*4*2}")
    q_(f"s_cselect_b32 s{sP0+2}, {S*D*2}, s{sP0+2}")
    q_(f"s_and_b32 s{sP0+1}, s{sP0+1}, 0xffff")
    q_(f"s_mov_b32 s{sP0+3}, 0x20000")
    p.add(q_.ins)
    rot_entry(p, 0)
    b_ = Prog()
    srd(b_, sWD, ptr(9), D*F*2); srd(b_, sOUT, ptr(10), S*D*2)
    srd(b_, sDBG, ptr(11), 256); srd(b_, sWS, ptr(12), WS_BYTES)
    a_ = Prog()
    dma_x(a_, 0, 0); dma_w(a_, 0, 0, WSLOT(0))
    p.add(interleave(a_.ins, b_.ins, 3))
    rot_entry(p, 1)
    b_ = Prog()
    b_("v_cmp_eq_u32 vcc, 0, v1")
    b_("v_mov_b32 v4, 0x7ffffff0")
    b_(f"v_cndmask_b32_e64 v{vONE}, v4, 0, vcc")
    b_("v_lshrrev_b32 v4, 3, v1")
    b_("v_and_b32 v5, 7, v1")
    b_(f"s_lshl_b32 s{s_t1}, s{s_rb}, 6")
    b_(f"s_lshl_b32 s{s_t2}, s{s_w}, 4")
    b_(f"s_add_u32 s{s_t2}, s{s_t2}, s{s_t1}")
    b_(f"v_add_u32 v6, s{s_t2}, v4")
    b_("v_mul_u32_u24 v6, 896, v6")
    b_(f"s_lshl_b32 s{s_t2}, s{s_cb}, 7")
    b_("v_lshlrev_b32 v7, 4, v5")
    b_(f"v_add3_u32 v8, v6, v7, s{s_t2}")
    b_("v_add_u32 v9, 6144, v8")
    b_(f"s_sub_u32 s{s_t1}, s{s_t1}, 8")
    b_(f"v_add_u32 v6, s{s_t1}, v4")
    b_("v_mul_i32_i24 v6, 896, v6")
    b_(f"v_add3_u32 v10, v6, v7, s{s_t2}")
    b_(f"s_lshl_b32 s{s_t2}, s{s_cb}, 9")
    b_(f"v_add_u32 v11, s{s_t2}, v2")
    b_(f"s_cmp_eq_u32 s{s_wt}, 0")
    b_(f"s_cselect_b64 vcc, -1, 0")
    b_("v_cndmask_b32 v10, v11, v10, vcc")
    a_ = Prog()
    dma_x(a_, 1, 1); dma_w(a_, 0, 1, WSLOT(1))
    p.add(interleave(a_.ins, b_.ins, 4))
    a_ = Prog()
    a_(f"s_lshl_b32 s{s_t1}, s{s_w}, 11")
    a_(f"s_add_u32 m0, s{s_t1}, {L_PK + 1024}")
    a_(f"buffer_load_dwordx4 v8, s[{sK}:{sK+3}], 0 offen lds", tok='p0in')
    a_(f"buffer_load_dwordx4 v9, s[{sK}:{sK+3}], 0 offen offset:1024 lds", tok='p0in')
    a_(f"s_add_u32 m0, s{s_t1}, {L_PV}")
    a_(f"buffer_load_dwordx4 v8, s[{sV}:{sV+3}], 0 offen lds", tok='p0in')
    a_(f"buffer_load_dwordx4 v9, s[{sV}:{sV+3}], 0 offen offset:1024 lds", tok='p0in')
    a_(f"s_mul_i32 s{s_t1}, s{s_wt}, {L_PW - L_PK}")
    a_(f"s_add_u32 m0, s{s_t1}, {L_PK}")
    a_(f"buffer_load_dwordx4 v10, s[{sP0}:{sP0+3}], 0 offen lds", tok='p0in')
    b_ = Prog()
    b_(f"s_or_b32 s{s_t4}, s2, s{s_w}")
    i = b_(f"s_cmp_lg_u32 s{s_t4}, 0")
    b_("s_cbranch_scc1 L_nononce")
    b_.raw(f"s_memrealtime s[{s_T}:{s_T+1}]")
    b_.raw("s_waitcnt lgkmcnt(0)")
    b_.raw(f"s_or_b32 s{s_T}, s{s_T}, 1")
    b_.raw(f"v_mov_b32 v12, s{s_T}")
    b_.raw(f"buffer_store_dword v12, v{vONE}, s[{sDBG}:{sDBG+3}], 0 offen sc1")
    b_("L_nononce:")
    p.add(a_.ins)
    p.add(b_.ins)
    p(f"s_lshr_b32 s{s_t0}, s{s_fs}, 1")
    for c in range(2, 7): rot_entry(p, c)
    p(f"s_and_b32 s{s_t0}, s{s_fs}, 1")
    p(f"s_lshl_b32 s{s_t0}, s{s_t0}, 1")
    p(f"s_xor_b32 s{s_t0}, s{s_t0}, s{s_wt}")
    p("v_and_b32 v4, 31, v1")
    p("v_lshrrev_b32 v5, 5, v1")
    p("v_lshrrev_b32 v6, 1, v4")
    p("v_and_b32 v6, 7, v6")
    p(f"s_lshl_b32 s{s_t1}, s{s_t0}, 1")
    p(f"v_or_b32 v7, s{s_t1}, v5")
    p("v_xor_b32 v7, v7, v6")
    p("v_lshlrev_b32 v7, 4, v7")
    p("v_lshl_add_u32 v7, v4, 7, v7")
    p(f"s_lshl_b32 s{s_t1}, s{s_wt}, 13")
    p(f"s_lshl_b32 s{s_t2}, s{s_wf}, 12")
    p(f"s_add_u32 s{s_t1}, s{s_t1}, s{s_t2}")
    p(f"v_add_u32 v7, s{s_t1}, v7")
    for sp in range(4):
        p(f"v_xor_b32 v{vXR+2*sp}, {32*sp}, v7")
        p(f"v_xor_b32 v{vXR+2*sp+1}, {32*sp + 4096}, v7")
    p("v_and_b32 v4, 3, v1")
    p("v_bfe_u32 v5, v1, 2, 2")
    p("v_bfe_u32 v6, v1, 4, 1")
    p("v_lshrrev_b32 v7, 5, v1")
    p("v_lshrrev_b32 v8, 1, v5")
    p(f"v_xor_b32 v8, s{s_wf}, v8")
    p("v_lshlrev_b32 v8, 6, v8")
    p("v_lshl_add_u32 v8, v6, 5, v8")
    p("v_lshl_add_u32 v8, v4, 3, v8")
    p("v_lshl_add_u32 v8, v5, 7, v8")
    p("v_lshl_add_u32 v8, v7, 10, v8")
    p(f"s_lshl_b32 s{s_t1}, s{s_t0}, 11")
    p(f"v_add_u32 v8, s{s_t1}, v8")
    for sp in range(4):
        p(f"v_xor_b32 v{vA0+sp}, {2048*sp}, v8")
        p(f"v_add_u32 v{vA1+sp}, 65536, v{vA0+sp}")
    p("v_and_b32 v4, 15, v1")
    p("v_bfe_u32 v5, v1, 4, 1")
    p("v_cmp_eq_u32 vcc, v4, v5")
    p("v_mov_b32 v6, 0x3f803f80")
    for j in range(4):
        p(f"v_cndmask_b32 v{vSEL+j}, 0, v6, vcc")
    for j in range(12):
        p(f"v_mov_b32 v{vMS+j}, 0")

def phase0_addr(p):
    p("v_and_b32 v4, 7, v0")
    p("v_lshrrev_b32 v5, 3, v0")
    p("v_lshlrev_b32 v6, 8, v5")
    p("v_lshl_add_u32 v6, v4, 4, v6")
    p(f"v_add_u32 v{p0_ka}, {L_PK + 5*128}, v6")
    p(f"v_lshlrev_b32 v7, 6, v4")
    p(f"v_add_u32 v{p0_wa}, {L_PW}, v7")
    p("v_sub_u32 v13, 31, v5")
    p("v_lshrrev_b32 v14, 2, v13")
    p("v_xor_b32 v14, v14, v4")
    p("v_lshlrev_b32 v14, 4, v14")
    p("v_and_b32 v13, 3, v13")
    p("v_lshl_add_u32 v14, v13, 2, v14")
    p("v_lshl_add_u32 v14, v4, 10, v14")
    p(f"v_add_u32 v{p0_kw}, {L_KT}, v14")
    p("v_lshrrev_b32 v8, 3, v5")
    p("v_xor_b32 v8, v8, v4")
    p("v_lshlrev_b32 v8, 4, v8")
    p("v_lshl_add_u32 v8, v5, 7, v8")
    p(f"v_add_u32 v{p0_kr0}, {L_KT}, v8")
    p(f"v_xor_b32 v{p0_kr1}, 64, v{p0_kr0}")
    p("v_lshlrev_b32 v10, 12, v5")
    p(f"v_lshl_add_u32 v{p0_st}, v4, 4, v10")

def phase0_reads(p):
    for j in range(4):
        p(f"ds_read_b128 v[{p0_w+4*j}:{p0_w+4*j+3}], v{p0_wa} offset:{16*j}")
    for j in range(5):
        p(f"ds_read_b128 v[{p0_k[j]}:{p0_k[j]+3}], v{p0_ka} offset:{128*j}")
    for j in range(2):
        p(f"ds_read_b128 v[{p0_v[j]}:{p0_v[j]+3}], v{p0_ka} offset:{L_PV - (L_PK + 5*128) + 128*j}")

def phase0_compute(p):
    t = p0_t
    for e in range(8):
        d, hi = e // 2, e % 2
        unp = (lambda dst, src: f"v_and_b32 v{dst}, s{s_msk}, v{src}") if hi else (lambda dst, src: f"v_lshlrev_b32 v{dst}, 16, v{src}")
        for j in range(5): p(unp(t + j, p0_k[j] + d))
        p(unp(t + 5, p0_v[0] + d)); p(unp(t + 6, p0_v[1] + d))
        w01, w23 = p0_w + 2*e, p0_w + 2*e + 1
        p(f"v_lshlrev_b32 v{t+7}, 16, v{w01}")
        p(f"v_and_b32 v{t+8}, s{s_msk}, v{w01}")
        p(f"v_lshlrev_b32 v{t+9}, 16, v{w23}")
        p(f"v_and_b32 v{t+10}, s{s_msk}, v{w23}")
        p(f"v_mul_f32 v{t+11}, v{t}, v{t+10}")
        p(f"v_mul_f32 v{t+12}, v{t+1}, v{t+10}")
        p(f"v_fmac_f32 v{t+11}, v{t+1}, v{t+9}")
        p(f"v_fmac_f32 v{t+12}, v{t+2}, v{t+9}")
        p(f"v_fmac_f32 v{t+11}, v{t+2}, v{t+8}")
        p(f"v_fmac_f32 v{t+12}, v{t+3}, v{t+8}")
        p(f"v_fmac_f32 v{t+11}, v{t+3}, v{t+7}")
        p(f"v_fmac_f32 v{t+12}, v{t+4}, v{t+7}")
        p(f"v_mul_f32 v{t+11}, v{t+11}, v{t+5}")
        p(f"v_mul_f32 v{t+12}, v{t+12}, v{t+6}")
        p(f"v_cvt_pk_bf16_f32 v{t+13+(e%2)}, v{t+12}, v{t+11}")
        p(f"ds_write_b32 v{p0_kw}, v{t+13+(e%2)} offset:{128*e}", tok='kt')

def phase0_store(p):
    p(f"ds_read_b128 v[{T0}:{T0+3}], v{p0_kr0}")
    p(f"ds_read_b128 v[{T0+4}:{T0+7}], v{p0_kr1} offset:4096")
    p(f"s_lshl_b32 s{s_oE}, s{s_cb}, 18")
    p(f"s_lshl_b32 s{s_oF}, s{s_rb}, 7")
    p(f"s_sub_u32 s{s_oE}, s{s_oE}, s{s_oF}")
    p(f"s_add_u32 s{s_oE}, s{s_oE}, {WS_KVR + 3968}")
    p(f"s_add_u32 s{s_oF}, s{s_oE}, {32*4096}")
    p(f"buffer_store_dwordx4 v[{T0}:{T0+3}], v{p0_st}, s[{sWS}:{sWS+3}], s{s_oE} offen sc1", tok='kvst')
    p(f"buffer_store_dwordx4 v[{T0+4}:{T0+7}], v{p0_st}, s[{sWS}:{sWS+3}], s{s_oF} offen sc1", tok='kvst')

def kv_flag(p):
    nonce_get(p)
    p(f"s_lshl_b32 s{s_oE}, s{s_cb}, 2")
    p(f"s_add_u32 s{s_oE}, s{s_oE}, s{s_w}")
    p(f"s_lshl_b32 s{s_oE}, s{s_oE}, 7")
    p(f"s_lshl_b32 s{s_oF}, s{s_rb}, 2")
    p(f"s_add_u32 s{s_oE}, s{s_oE}, s{s_oF}")
    if WS_F0: p(f"s_add_u32 s{s_oE}, s{s_oE}, {WS_F0}")
    flag_post(p, s_oE, ['kvst'])

def g1_stats(p):
    t = vPK
    for sp in range(2):
        for j in range(4):
            p(f"v_accvgpr_read_b32 v{t+4*sp+j}, a{XF(sp, 0)+j}")
    s, q = t + 8, t + 9
    for k in range(8):
        p(f"v_lshlrev_b32 v{t+10}, 16, v{t+k}")
        p(f"v_and_b32 v{t+11}, s{s_msk}, v{t+k}")
        if k == 0:
            p(f"v_add_f32 v{s}, v{t+10}, v{t+11}")
            p(f"v_mul_f32 v{q}, v{t+10}, v{t+10}")
        else:
            p(f"v_add_f32 v{s}, v{s}, v{t+10}")
            p(f"v_fmac_f32 v{q}, v{t+10}, v{t+10}")
            p(f"v_add_f32 v{s}, v{s}, v{t+11}")
        p(f"v_fmac_f32 v{q}, v{t+11}, v{t+11}")
    p(f"v_lshrrev_b32 v{t+10}, 5, v1")
    p(f"v_lshlrev_b32 v{t+10}, 9, v{t+10}")
    p(f"v_and_b32 v{t+11}, 31, v1")
    p(f"v_permlane32_swap_b32 v{s}, v{q}")
    p(f"v_lshl_add_u32 v{t+10}, v{t+11}, 2, v{t+10}")
    p(f"v_add_f32 v{s}, v{s}, v{q}")
    p(f"s_mul_i32 s{s_oE}, s{s_rbk}, 14")
    p(f"s_add_u32 s{s_oE}, s{s_oE}, s{s_fs}")
    p(f"s_lshl_b32 s{s_oE}, s{s_oE}, 10")
    p(f"s_lshl_b32 s{s_oF}, s{s_wt}, 8")
    p(f"s_add_u32 s{s_oE}, s{s_oE}, s{s_oF}")
    p(f"s_lshl_b32 s{s_oF}, s{s_wf}, 7")
    p(f"s_add_u32 s{s_oE}, s{s_oE}, s{s_oF}")
    p(f"s_add_u32 s{s_oE}, s{s_oE}, {WS_ST}")
    p(f"buffer_store_dword v{s}, v{t+10}, s[{sWS}:{sWS+3}], s{s_oE} offen sc1", tok='hst0')

def h_bases(p):
    p(f"s_lshl_b32 s{s_t0}, s{s_rbk}, 2")
    p(f"s_lshl_b32 s{s_t1}, s{s_wt}, 1")
    p(f"s_add_u32 s{s_t0}, s{s_t0}, s{s_t1}")
    p(f"s_add_u32 s{s_t1}, s{s_t0}, s{s_wf}")
    p(f"s_xor_b32 s{s_t2}, s{s_t1}, 1")
    p(f"s_lshl_b32 s{s_t3}, s{s_fs}, 2")
    p(f"s_add_u32 s{s_t3}, s{s_t3}, s{s_wf}")
    for r, src in ((s_h0, s_t1), (s_h0 + 1, s_t2)):
        p(f"s_mul_i32 s{r}, s{src}, 56")
        p(f"s_add_u32 s{r}, s{r}, s{s_t3}")
        p(f"s_lshl_b32 s{r}, s{r}, 11")
        p(f"s_add_u32 s{r}, s{r}, {WS_H}")

def gemm2_setup(p):
    a, b, c, d, e = 104, 105, 106, 107, 108
    for k in range(7):
        p(f"s_mov_b32 s{s_a16+k}, {16384*k}")
        p(f"s_mov_b32 s{s_wda+k}, {229376*k}")
    p(f"v_lshrrev_b32 v{a}, 3, v1")
    p(f"v_and_b32 v{b}, 7, v1")
    p(f"v_bfe_u32 v{c}, v1, 4, 1")
    p(f"v_lshlrev_b32 v{c}, 2, v{c}")
    p(f"v_xor_b32 v{c}, v{b}, v{c}")
    p(f"v_lshlrev_b32 v{c}, 4, v{c}")
    p(f"s_lshl_b32 s{s_oE}, s{s_wf}, 2")
    p(f"s_add_u32 s{s_oE}, s{s_oE}, s{s_wt}")
    p(f"s_lshl_b32 s{s_oF}, s{s_oE}, 5")
    p(f"v_add_u32 v{a}, s{s_oF}, v{a}")
    p(f"v_mul_u32_u24 v{a}, 896, v{a}")
    p(f"s_lshl_b32 s{s_oF}, s{s_cb}, 7")
    p(f"v_add3_u32 v{vWDD}, v{a}, v{c}, s{s_oF}")
    for j in range(1, 4):
        p(f"v_add_u32 v{vWDD+j}, {6144*j}, v{vWDD}")
    for j in range(4):
        p(f"v_add_u32 v{vWDD+4+j}, {57344}, v{vWDD+j}")
    p(f"v_and_b32 v{a}, 3, v1")
    p(f"v_bfe_u32 v{b}, v1, 2, 2")
    p(f"v_bfe_u32 v{c}, v1, 4, 1")
    p(f"v_lshrrev_b32 v{d}, 5, v1")
    p(f"v_lshrrev_b32 v{e}, 1, v{b}")
    p(f"v_lshlrev_b32 v{e}, 6, v{e}")
    p(f"v_lshl_add_u32 v{e}, v{c}, 5, v{e}")
    p(f"v_lshl_add_u32 v{e}, v{a}, 3, v{e}")
    p(f"v_lshl_add_u32 v{e}, v{b}, 7, v{e}")
    p(f"v_lshl_add_u32 v{e}, v{d}, 9, v{e}")
    p(f"s_add_u32 s{s_oF}, s{s_w4k}, {L_WD}")
    p(f"v_add_u32 v{vWR}, s{s_oF}, v{e}")
    p(f"v_xor_b32 v{vWR+1}, 64, v{vWR}")
    p(f"v_add_u32 v{vWR+2}, 65536, v{vWR}")
    p(f"v_add_u32 v{vWR+3}, 65536, v{vWR+1}")
    p(f"s_mul_i32 s{s_oF}, s{s_rb}, 112")
    p(f"s_add_u32 s{s_oE}, s{s_oE}, s{s_oF}")
    p(f"s_lshl_b32 s{s_oE}, s{s_oE}, 11")
    p(f"s_add_u32 s{s_oE}, s{s_oE}, {WS_H}")
    p(f"v_add_u32 v{vHL}, s{s_oE}, v2")
    p(f"v_add_u32 v{vHL+1}, {56*2048}, v{vHL}")
    p(f"v_add_u32 v{vHL+2}, 4096, v{vHL}")
    p(f"v_add_u32 v{vHL+3}, 4096, v{vHL+1}")

L_JUNK = L_C + 2048
def select_out(p, pas):
    a = 8
    p(f"v_and_b32 v{a}, 15, v1")
    p(f"v_lshlrev_b32 v{a}, 2, v{a}")
    p(f"v_cmp_gt_u32 vcc, 16, v1")
    p(f"v_lshlrev_b32 v11, 2, v1")
    p(f"v_add_u32 v11, {L_JUNK}, v11")
    if pas == 0:
        p(f"s_lshl_b32 s{s_oE}, s{s_wt}, 8")
        p(f"s_lshl_b32 s{s_oF}, s{s_wf}, 7")
        p(f"s_add_u32 s{s_oE}, s{s_oE}, s{s_oF}")
        p(f"s_add_u32 s{s_oE}, s{s_oE}, {L_M}")
        p(f"v_add_u32 v{a+1}, s{s_oE}, v{a}")
        p(f"v_cndmask_b32 v{a+1}, v11, v{a+1}, vcc")
        p(f"ds_write_b32 v{a+1}, v{vMS}", tok='sel0')
        p(f"ds_write_b32 v{a+1}, v{vMS+1} offset:64", tok='sel0')
    p(f"s_lshl_b32 s{s_oE}, s{s_wt}, 9")
    p(f"s_lshl_b32 s{s_oF}, s{s_wf}, 7")
    p(f"s_add_u32 s{s_oF}, s{s_oF}, s{s_oE}")
    p(f"s_add_u32 s{s_oF}, s{s_oF}, {L_C + 1024*pas}")
    p(f"v_add_u32 v{a+2}, s{s_oF}, v{a}")
    p(f"v_cndmask_b32 v{a+2}, v11, v{a+2}, vcc")
    for mat in range(2):
        for j in range(2):
            src = f"v{vCG+4*mat+j}" if pas == 0 else f"a{248+4*mat+j}"
            p(f"ds_write_b32 v{a+2}, {src} offset:{256*mat + 64*j}", tok=f'sel{pas}')

def epi_reads(p, pas):
    p("v_lshrrev_b32 v8, 5, v1")
    p("v_lshlrev_b32 v8, 4, v8")
    p(f"s_lshl_b32 s{s_oF}, s{s_wf}, 7")
    p(f"s_add_u32 s{s_oF}, s{s_oF}, {L_C + 1024*pas}")
    p(f"v_add_u32 v8, s{s_oF}, v8")
    for g in range(4):
        p(f"ds_read_b128 v[{vcg+4*g}:{vcg+4*g+3}], v8 offset:{32*g}")
    for g in range(4):
        p(f"ds_read_b128 v[{vPK+4*g}:{vPK+4*g+3}], v8 offset:{512+32*g}")
    if pas == 0:
        p("v_and_b32 v9, 31, v1")
        p("v_lshlrev_b32 v9, 2, v9")
        p(f"s_lshl_b32 s{s_oE}, s{s_wt}, 8")
        p(f"s_lshl_b32 s{s_oF}, s{s_wf}, 7")
        p(f"s_add_u32 s{s_oE}, s{s_oE}, s{s_oF}")
        p(f"s_add_u32 s{s_oE}, s{s_oE}, {L_M}")
        p(f"v_add_u32 v9, s{s_oE}, v9")
        p("v_xor_b32 v10, 128, v9")
        p(f"ds_read_b32 v{vm}, v9")
        p(f"ds_read_b32 v{vm+1}, v10")
    for g in range(4):
        p(f"ds_read_b128 v[{vcu+4*g}:{vcu+4*g+3}], v8 offset:{256+32*g}")
    for i in range(16):
        p(f"v_add_f32 v{vcg+i}, v{vcg+i}, v{vPK+i}")
    for g in range(4):
        p(f"ds_read_b128 v[{vPK+4*g}:{vPK+4*g+3}], v8 offset:{768+32*g}")
    if pas == 0:
        p(f"s_mov_b32 s{s_oE}, 0x3b124925")
        p(f"v_mul_f32 v{vm}, s{s_oE}, v{vm}")
        p(f"v_mul_f32 v{vm+1}, s{s_oE}, v{vm+1}")
        p(f"v_cvt_pk_bf16_f32 v9, v{vm}, v{vm+1}")
        p(f"v_lshlrev_b32 v{vm}, 16, v9")
        p(f"v_and_b32 v{vm+1}, s{s_msk}, v9")
    for i in range(16):
        p(f"v_add_f32 v{vcu+i}, v{vcu+i}, v{vPK+i}")

def epi_math(p, pas, bank):
    for n in range(2):
        G, U = ACC(bank, 0, n), ACC(bank, 1, n)
        for j in range(2):
            for e in range(8):
                i = 8*j + e
                p(f"v_fma_f32 v{G+i}, -v{vm+n}, v{vcg+i}, v{G+i}")
                p(f"v_fma_f32 v{U+i}, -v{vm+n}, v{vcu+i}, v{U+i}")
            for e in range(8):
                i = 8*j + e
                p(f"v_max_f32 v{G+i}, 0, v{G+i}")
            for e in range(8):
                i = 8*j + e
                p(f"v_mul_f32 v{G+i}, v{G+i}, v{U+i}")
            o = vPK + 8*n + 4*j
            for m in range(4):
                p(f"v_cvt_pk_bf16_f32 v{o+m}, v{G+8*j+2*m}, v{G+8*j+2*m+1}")
            if j == 0:
                p(f"s_add_u32 s{s_oE}, s{s_h0+n}, {4096*pas}")
            p(f"buffer_store_dwordx4 v[{o}:{o+3}], v2, s[{sWS}:{sWS+3}], s{s_oE} offen offset:{1024*j} sc1", tok=f"hst{pas}")

def h_flag(p, pas):
    p(f"s_lshl_b32 s{s_oE}, s{s_rbk}, 3")
    p(f"s_add_u32 s{s_oE}, s{s_oE}, s{s_w}")
    p(f"s_lshl_b32 s{s_oE}, s{s_oE}, 6")
    p(f"s_lshl_b32 s{s_oF}, s{s_fs}, 2")
    p(f"s_add_u32 s{s_oE}, s{s_oE}, s{s_oF}")
    p(f"s_add_u32 s{s_oE}, s{s_oE}, {WS_F1 + 256*pas}")
    flag_post(p, s_oE, [f"hst{pas}"])

def g1_step_reads(G):
    pas, g = divmod(G, 28); c, sp = divmod(g, 4)
    lds = WSLOT(c % 4) if pas == 0 else P2SLOT[c]
    base = vA1 if lds >= 65536 else vA0
    o = lds - 65536 if lds >= 65536 else lds
    buf = G % 3
    C = 7*pas + c
    tok = f"s{G}"
    def ar(mat):
        q = Prog()
        for u in range(2):
            r = AF(buf, mat) + 2*u
            q(f"ds_read_b64_tr_b16 a[{r}:{r+1}], v{base+sp} offset:{o + 8192*mat + 512*u}", tok=tok)
        return q.ins
    xr = Prog()
    if pas == 0:
        for n in range(2):
            r = XF(g, n)
            xr(f"ds_read_b128 a[{r}:{r+3}], v{vXR+2*sp+n} offset:{XSLOT(c % 4)}", tok=tok)
    return ar(0), xr.ins, ar(1)

def gemm1_main(extra_wait):
    p = Prog()
    step_nm, bar_nm = [], {}
    nm = 0
    p.wait("x0", "w00")
    p("s_barrier")
    g0, x0, u0 = g1_step_reads(0)
    p.add(g0 + x0 + u0)
    for G in range(56):
        pas, g = divmod(G, 28); c, sp = divmod(g, 4)
        C = 7*pas + c
        step_nm.append(nm)
        if sp == 3 and C < 13:
            nC = C + 1
            toks = ([f"x{nC}", f"w0{nC}"] if nC < 7 else [f"w1{nC-7}"]) + [f"s{G}"] + extra_wait.get(C, [])
            p.wait(*toks)
            if OPT.get('fine') and C in (0, 3, 6, 7, 9, 12): stamp(p, 10 + C)
            p("s_barrier")
            bar_nm[C] = nm + 1
        if G + 1 < 56: ng, nx, nu = g1_step_reads(G + 1)
        else: ng, nx, nu = [], [], []
        buf = G % 3; bank = pas
        first = (g == 0)
        k = 0
        nxt = ng + nx[:1] + nx[1:] + nu
        h = (len(nxt) + 1) // 2
        for mat in range(2):
            for n in range(2):
                d = ACC(bank, mat, n); a = AF(buf, mat); b = XF(g, n)
                i = p(f"v_mfma_f32_32x32x16_bf16 v[{d}:{d+15}], a[{a}:{a+3}], a[{b}:{b+3}], " + ("0" if first else f"v[{d}:{d+15}]"))
                if k == 0: i[0].need = [f"s{G}"]
                nm += 1
                if k == 0: p.add(nxt[:h])
                elif k == 1: p.add(nxt[h:])
                k += 1
        if pas == 0:
            b = XF(g, 0)
            p(f"v_mfma_f32_16x16x32_bf16 v[{vMS}:{vMS+3}], v[{vSEL}:{vSEL+3}], a[{b}:{b+3}], v[{vMS}:{vMS+3}]"); nm += 1
        if sp % 2 == 0:
            for mat in range(2):
                a = AF(buf, mat)
                acc = f"v[{vCG+4*mat}:{vCG+4*mat+3}]" if pas == 0 else f"a[{248+4*mat}:{248+4*mat+3}]"
                c0 = "0" if (G == 28) else acc
                p(f"v_mfma_f32_16x16x32_bf16 {acc}, v[{vSEL}:{vSEL+3}], a[{a}:{a+3}], {c0}"); nm += 1
    return p.ins, step_nm, bar_nm

cv_kv, cv_L, cv_hd, cv_D, cv_t = 128, 136, 160, 162, 164
vB, vA, vXw, vHw, vZw, vHd, vKs, vYs = 16, 17, 18, 19, 24, 25, 26, 27

def conv_addr(p):
    a, b, c, d = 4, 5, 6, 7
    p(f"s_mul_i32 s{s_oE}, s{s_wf}, {XRSTR}")
    p(f"s_lshl_b32 s{s_oF}, s{s_wt}, 11")
    p(f"s_add_u32 s{s_oE}, s{s_oE}, s{s_oF}")
    p(f"s_add_u32 s{s_oE}, s{s_oE}, {L_XR}")
    p(f"v_add_u32 v{vXw}, s{s_oE}, v2")
    p(f"s_mul_i32 s{s_oE}, s{s_wf}, {HCH}")
    p(f"s_add_u32 s{s_oE}, s{s_oE}, s{s_oF}")
    p(f"s_add_u32 s{s_oE}, s{s_oE}, {L_H + 32}")
    p(f"v_add_u32 v{vHw}, s{s_oE}, v2")
    p(f"s_mul_i32 s{s_oE}, s{s_wf}, {XRSTR}")
    p(f"s_add_u32 s{s_oE}, s{s_oE}, {L_XR + 4096}")
    p(f"v_and_b32 v{a}, 31, v1")
    p(f"v_lshlrev_b32 v{a}, 4, v{a}")
    p(f"v_add_u32 v{vZw}, s{s_oE}, v{a}")
    p(f"v_bfe_u32 v{a}, v1, 3, 2")
    p(f"v_and_b32 v{b}, 7, v1")
    p(f"v_mul_u32_u24 v{a}, {HSTR}, v{a}")
    p(f"v_lshl_add_u32 v{a}, v{b}, 2, v{a}")
    p(f"s_mul_i32 s{s_oE}, s{s_wf}, {HCH}")
    p(f"s_add_u32 s{s_oE}, s{s_oE}, {L_H}")
    p(f"v_add_u32 v{vHd}, s{s_oE}, v{a}")
    p(f"v_and_b32 v{a}, 15, v1")
    p(f"v_lshrrev_b32 v{b}, 4, v1")
    p(f"v_lshlrev_b32 v{c}, 5, v{a}")
    p(f"v_lshl_add_u32 v{vYs}, v{b}, 3, v{c}")
    p(f"v_lshlrev_b32 v{d}, 4, v{b}")
    p(f"v_sub_u32 v{d}, v{d}, v{c}")
    p(f"s_mul_i32 s{s_oE}, s{s_wf}, {XRSTR}")
    p(f"s_lshl_b32 s{s_oF}, s{s_wt}, 8")
    p(f"s_add_u32 s{s_oE}, s{s_oE}, s{s_oF}")
    p(f"s_add_u32 s{s_oE}, s{s_oE}, {L_XR + 4064 - 3584}")
    p(f"v_add_u32 v{vB}, s{s_oE}, v{d}")
    p(f"v_add_u32 v{c}, 1, v{a}")
    p(f"v_and_b32 v{d}, 3, v{c}")
    p(f"v_sub_u32 v{c}, v{c}, v{d}")
    p(f"v_lshlrev_b32 v{c}, 1, v{c}")
    p(f"v_mul_u32_u24 v{d}, {HSTR}, v{d}")
    p(f"v_add_u32 v{c}, v{c}, v{d}")
    p(f"v_lshl_add_u32 v{c}, v{b}, 4, v{c}")
    p(f"s_mul_i32 s{s_oE}, s{s_wf}, {HCH}")
    p(f"s_add_u32 s{s_oE}, s{s_oE}, s{s_oF}")
    p(f"s_add_u32 s{s_oE}, s{s_oE}, {L_H}")
    p(f"v_add_u32 v{vA}, s{s_oE}, v{c}")
    p(f"s_mul_i32 s{s_oE}, s{s_wf}, {XRSTR}")
    p(f"s_lshl_b32 s{s_oF}, s{s_wt}, 11")
    p(f"s_sub_u32 s{s_oE}, s{s_oE}, s{s_oF}")
    p(f"s_add_u32 s{s_oE}, s{s_oE}, {L_XR + 2*2044 - 3*512}")
    p(f"v_sub_u32 v{vKs}, s{s_oE}, v{vYs}")

def conv_poll_addr(p):
    p(f"s_lshl_b32 s{s_oE}, s2, 1")
    p(f"s_add_u32 s{s_oE}, s{s_oE}, s{s_wf}")
    p(f"s_lshr_b32 s{s_oF}, s{s_oE}, 6")
    p(f"s_lshl_b32 s{s_oF}, s{s_oF}, 2")
    p(f"s_bfe_u32 s{s_oE}, s{s_oE}, 0x20003")
    p(f"s_add_u32 s{s_oE}, s{s_oE}, s{s_oF}")
    p(f"s_lshl_b32 s{s_oE}, s{s_oE}, 7")
    p(f"s_xor_b32 s{s_oF}, s{s_wt}, 1")
    p(f"s_lshl_b32 s{s_oF}, s{s_oF}, 6")
    p(f"s_add_u32 s{s_t4}, s{s_oE}, s{s_oF}")
    if WS_F0: p(f"s_add_u32 s{s_t4}, s{s_t4}, {WS_F0}")
    p(f"v_and_b32 v95, 15, v1")
    p(f"v_lshlrev_b32 v95, 2, v95")

def conv_loads_ssm(p):
    p(f"s_lshl_b32 s{s_oE}, s2, 1")
    p(f"s_add_u32 s{s_oE}, s{s_oE}, s{s_wf}")
    p(f"s_lshl_b32 s{s_oF}, s{s_oE}, 1")
    p("v_mov_b32 v4, 0")
    p(f"buffer_load_ushort v{cv_D}, v4, s[{sSD}:{sSD+3}], s{s_oF} offen")
    p(f"s_lshl_b32 s{s_oE}, s{s_oE}, 12")
    p(f"buffer_load_dwordx2 v[{cv_hd}:{cv_hd+1}], v4, s[{sSSM}:{sSSM+3}], s{s_oE} offen")
    p(f"s_lshl_b32 s{s_oF}, s{s_wt}, 11")
    p(f"s_add_u32 s{s_oE}, s{s_oE}, s{s_oF}")
    for jj in range(2):
        for k in range(3):
            r = cv_L + 12*jj + 4*k
            p(f"buffer_load_dwordx4 v[{r}:{r+3}], v2, s[{sSSM}:{sSSM+3}], s{s_oE} offen offset:{1024*jj + 4*k}")

def conv_loads_kv(p):
    p(f"s_lshl_b32 s{s_oE}, s2, 1")
    p(f"s_add_u32 s{s_oE}, s{s_oE}, s{s_wf}")
    p(f"s_lshl_b32 s{s_oE}, s{s_oE}, 12")
    p(f"s_lshl_b32 s{s_oF}, s{s_wt}, 11")
    p(f"s_add_u32 s{s_oE}, s{s_oE}, s{s_oF}")
    p(f"s_add_u32 s{s_oE}, s{s_oE}, {WS_KVR}")
    for j in range(2):
        p(f"buffer_load_dwordx4 v[{cv_kv+4*j}:{cv_kv+4*j+3}], v2, s[{sWS}:{sWS+3}], s{s_oE} offen offset:{1024*j} sc1")

def conv_build(p):
    tt = cv_t
    for jj in range(2):
        L0, L1, L2 = cv_L + 12*jj, cv_L + 12*jj + 4, cv_L + 12*jj + 8
        p(f"ds_write_b128 v{vHw}, v[{L0}:{L0+3}] offset:{1024*jj}", tok='cv')
        for k in range(4):
            p(f"v_alignbit_b32 v{tt+k}, v{L1+k}, v{L0+k}, 16")
        p(f"ds_write_b128 v{vHw}, v[{L1}:{L1+3}] offset:{1024*jj + 2*HSTR}", tok='cv')
        p(f"ds_write_b128 v{vHw}, v[{tt}:{tt+3}] offset:{1024*jj + HSTR}", tok='cv')
        for k in range(4):
            p(f"v_alignbit_b32 v{tt+4+k}, v{L2+k}, v{L1+k}, 16")
        p(f"ds_write_b128 v{vHw}, v[{tt+4}:{tt+7}] offset:{1024*jj + 3*HSTR}", tok='cv')
    h0, h1 = cv_hd, cv_hd + 1
    p("v_and_b32 v11, 31, v1")
    p("v_mov_b32 v8, 0")
    p(f"v_lshlrev_b32 v9, 16, v{h0}")
    p(f"v_alignbit_b32 v10, v{h1}, v{h0}, 16")
    for val, src in ((15, 9), (23, h0), (31, 10), (30, 9)):
        p(f"v_cmp_eq_u32 vcc, {val}, v11")
        p(f"v_cndmask_b32 v8, v8, v{src}, vcc")
    p(f"ds_write_b32 v{vHd}, v8", tok='cv')
    for j in range(4): p(f"v_mov_b32 v{8+j}, 0")
    p(f"ds_write_b128 v{vZw}, v[8:11]", tok='cv')
    for j in range(2):
        p(f"ds_write_b128 v{vXw}, v[{cv_kv+4*j}:{cv_kv+4*j+3}] offset:{1024*j}", tok='cv')

cacc = lambda t: 128 + 4*t
cBF = lambda s: 160 + 4*s
cAF = lambda k: 56 + 4*k

def conv_main():
    p = Prog()
    def a_reads(rho, i):
        q = Prog(); a = cAF((8*rho + (7 - i)) % 4)
        q(f"ds_read_b64 v[{a}:{a+1}], v{vA} offset:{64*rho + 512*i}")
        q(f"ds_read_b64 v[{a+2}:{a+3}], v{vA} offset:{64*rho + 512*i + 8}")
        return q.ins
    def b_read(rho, s):
        q = Prog()
        q(f"ds_read_b128 v[{cBF(s)}:{cBF(s)+3}], v{vB} offset:{64*rho + 512*(7-s)}")
        return q.ins
    p.add(a_reads(0, 7) + b_read(0, 0) + a_reads(0, 6) + b_read(0, 1) + a_reads(0, 5))
    for rho in range(4):
        for i in range(7, -1, -1):
            a = cAF((8*rho + (7 - i)) % 4)
            pend = []
            n_lin = 8*rho + (7 - i) + 3
            if n_lin < 32: pend += a_reads(n_lin // 8, 7 - n_lin % 8)
            if i >= 2: pend = b_read(rho, 9 - i) + pend if 9 - i <= 7 else pend
            tiles = list(range(i, 8))
            for k, t in enumerate(tiles):
                first = (rho == 0 and (t - i == 0) and False)
                c0 = "0" if (rho == 0 and i == 7 - 0 and t == 7) else f"v[{cacc(t)}:{cacc(t)+3}]"
                if rho == 0 and t == i: c0 = "0"
                p(f"v_mfma_f32_16x16x32_bf16 v[{cacc(t)}:{cacc(t)+3}], v[{a}:{a+3}], v[{cBF(t-i)}:{cBF(t-i)+3}], {c0}")
                if i == 0 and rho < 3 and k <= 1:
                    p.add(b_read(rho + 1, k))
                elif pend:
                    p.add([pend.pop(0)])
            p.add(pend)
    return p.ins

def conv_reduce(p):
    p("s_waitcnt lgkmcnt(0)")
    p("s_barrier")
    p(f"s_xor_b32 s{s_t0}, s{s_w}, 1")
    p(f"s_lshl_b32 s{s_t0}, s{s_t0}, 12")
    p(f"v_add_u32 v4, s{s_t0}, v2")
    p(f"v_add_u32 v5, s{s_w4k}, v2")
    p(f"v_lshlrev_b32 v{cv_D2}, 16, v{cv_D2}")
    p("s_nop 2")
    p(f"s_cmp_eq_u32 s{s_wt}, 0")
    p("s_cbranch_scc1 L_cv_lo")
    for k in range(4):
        p.raw(f"ds_write_b128 v4, v[{cacc(k)}:{cacc(k)+3}] offset:{L_CRED + 1024*k}")
    for k in range(16):
        p.raw(f"v_mov_b32 v{160+k}, v{cacc(4)+k}")
    p.raw("s_branch L_cv_join")
    p("L_cv_lo:")
    for k in range(4):
        p.raw(f"ds_write_b128 v4, v[{cacc(4+k)}:{cacc(4+k)+3}] offset:{L_CRED + 1024*k}")
    for k in range(16):
        p.raw(f"v_mov_b32 v{160+k}, v{cacc(0)+k}")
    p("L_cv_join:")
    for k in range(4):
        p(f"ds_read_b64 v[{56+2*k}:{56+2*k+1}], v{vKs} offset:{512*(3-k)}")
    p("s_waitcnt lgkmcnt(0)")
    p("s_barrier")
    for k in range(4):
        p(f"ds_read_b128 v[{176+4*k}:{176+4*k+3}], v5 offset:{L_CRED + 1024*k}")
    p(f"s_lshl_b32 s{s_t0}, s2, 1")
    p(f"s_add_u32 s{s_t0}, s{s_t0}, s{s_wf}")
    p(f"s_lshl_b32 s{s_t0}, s{s_t0}, 12")
    p(f"s_lshl_b32 s{s_t2}, s{s_wt}, 11")
    p(f"s_add_u32 s{s_t0}, s{s_t0}, s{s_t2}")
    p(f"s_add_u32 s{s_t0}, s{s_t0}, {WS_YT}")
    for k in range(4):
        a, b = 56 + 2*k, 56 + 2*k + 1
        p(f"v_and_b32 v8, s{s_msk}, v{b}")
        p(f"v_lshlrev_b32 v9, 16, v{b}")
        p(f"v_and_b32 v10, s{s_msk}, v{a}")
        p(f"v_lshlrev_b32 v11, 16, v{a}")
        for r in range(4):
            p(f"v_fmac_f32 v{160+4*k+r}, v{cv_D2}, v{8+r}")
        for r in range(4):
            p(f"v_add_f32 v{160+4*k+r}, v{160+4*k+r}, v{176+4*k+r}")
        p(f"v_cvt_pk_bf16_f32 v{64+2*k}, v{160+4*k}, v{160+4*k+1}")
        p(f"v_cvt_pk_bf16_f32 v{64+2*k+1}, v{160+4*k+2}, v{160+4*k+3}")
        p(f"buffer_store_dwordx2 v[{64+2*k}:{64+2*k+1}], v{vYs}, s[{sWS}:{sWS+3}], s{s_t0} offen offset:{512*k} sc1", tok='yst')

cv_D2 = 89

def y_flag(p):
    p(f"s_lshl_b32 s{s_oE}, s2, 1")
    p(f"s_add_u32 s{s_oE}, s{s_oE}, s{s_wf}")
    p(f"s_lshr_b32 s{s_oF}, s{s_oE}, 6")
    p(f"s_lshl_b32 s{s_oF}, s{s_oF}, 1")
    p(f"s_add_u32 s{s_oF}, s{s_oF}, s{s_wt}")
    p(f"s_lshl_b32 s{s_oF}, s{s_oF}, 8")
    p(f"s_and_b32 s{s_oE}, s{s_oE}, 63")
    p(f"s_lshl_b32 s{s_oE}, s{s_oE}, 2")
    p(f"s_add_u32 s{s_oE}, s{s_oE}, s{s_oF}")
    p(f"s_add_u32 s{s_oE}, s{s_oE}, {WS_F2}")
    flag_post(p, s_oE, ['yst'])

def wd_reads(p, a, j, f, base, tok=None):
    for dt in range(2):
        for u in range(2):
            r = base + 4*dt + 2*u
            reg = vWR + dt + (2 if a >= 4 else 0)
            o = 16384*(a - 4 if a >= 4 else a) + 2048*j + 1024*u
            p(f"ds_read_b64_tr_b16 {f}[{r}:{r+1}], v{reg} offset:{o}", tok=tok)

def wd_to_regs(p, a):
    p.wait(f"wd0{a}")
    for j in range(2):
        wd_reads(p, a, j, 'a', WDF(a, j, 0), tok=f"wr{a}")

def h_poll_addr(p, pas, sreg):
    p(f"s_lshr_b32 s{s_oE}, s{s_rb}, 1")
    p(f"s_lshl_b32 s{s_oE}, s{s_oE}, 3")
    p(f"s_lshl_b32 s{s_oF}, s{s_wt}, 1")
    p(f"s_add_u32 s{s_oE}, s{s_oE}, s{s_oF}")
    p(f"s_and_b32 s{s_oF}, s{s_rb}, 1")
    p(f"s_add_u32 s{s_oE}, s{s_oE}, s{s_oF}")
    p(f"s_lshl_b32 s{s_oE}, s{s_oE}, 6")
    p(f"s_add_u32 s{sreg}, s{s_oE}, {WS_F1 + 256*pas}")

def h_loads(p, pas, a, j):
    for n in range(2):
        r = HF(a, j, n)
        so = f"s{s_a16+a}" if a else "0"
        p(f"buffer_load_dwordx4 a[{r}:{r+3}], v{vHL+2*pas+n}, s[{sWS}:{sWS+3}], {so} offen offset:{1024*j} sc1")

ACC2 = lambda dt, n: 192 + 32*dt + 16*n
WJ = lambda buf: 128 + 8*buf

def gemm2_main(h1_gate):
    p = Prog()
    steps = [(pas, a, j) for pas in range(2) for a in range(7) for j in range(2)]
    step_nm = []
    nm = 0
    pend_h = []
    for k, (pas, a, j) in enumerate(steps):
        step_nm.append(nm)
        if k == 8: p("s_barrier")
        nxt = Prog()
        if k + 1 < 28 and steps[k+1][0] == 1:
            _, a2, j2 = steps[k+1]
            if j2 == 0: nxt.wait(f"wd1{a2}")
            wd_reads(nxt, a2, j2, 'v', WJ((k + 1) % 3), tok=f"wq{a2}")
        nl = list(nxt.ins)
        m = 0
        for dt in range(2):
            for n in range(2):
                d = ACC2(dt, n)
                A = f"a[{WDF(a, j, dt)}:{WDF(a, j, dt)+3}]" if pas == 0 else f"v[{WJ(k % 3)+4*dt}:{WJ(k % 3)+4*dt+3}]"
                B = HF(a, j, n)
                p(f"v_mfma_f32_32x32x16_bf16 v[{d}:{d+15}], {A}, a[{B}:{B+3}], " + ("0" if k == 0 else f"v[{d}:{d+15}]"))
                nm += 1
                take = nl[:2] if m < 3 else nl
                if take and take[0].kind == 'pwait': take = nl[:3]
                p.add(take); nl = nl[len(take):]
                m += 1
        if pas == 0:
            pend_h.append((a, j))
            if k >= h1_gate[0]:
                if k == h1_gate[0]: p.add(h1_gate[1])
                q = Prog()
                for (aa, jj) in pend_h[:2]: h_loads(q, 1, aa, jj)
                pend_h = pend_h[2:]
                p.add(q.ins)
        elif pend_h:
            q = Prog()
            for (aa, jj) in pend_h[:2]: h_loads(q, 1, aa, jj)
            pend_h = pend_h[2:]
            p.add(q.ins)
    return p.ins, step_nm

f_q, f_y, f_o = 16, 17, 18
f_st = 160
f_yv = 152
LQ = lambda: L_WD
def final_addr(p):
    p("v_lshrrev_b32 v4, 3, v1")
    p("v_and_b32 v5, 7, v1")
    p("v_xor_b32 v6, v5, v4")
    p("v_lshlrev_b32 v6, 4, v6")
    p(f"s_lshl_b32 s{s_oE}, s{s_rb}, 6")
    p(f"s_lshl_b32 s{s_oF}, s{s_w}, 4")
    p(f"s_add_u32 s{s_oE}, s{s_oE}, s{s_oF}")
    p(f"v_add_u32 v7, s{s_oE}, v4")
    p("v_mul_u32_u24 v7, 896, v7")
    p(f"s_lshl_b32 s{s_oF}, s{s_cb}, 7")
    p(f"v_add3_u32 v{f_q}, v7, v6, s{s_oF}")
    p(f"v_add_u32 v{f_o}, 6144, v{f_q}")
    p(f"s_lshl_b32 s{s_oE}, s{s_cb}, 6")
    p(f"s_lshl_b32 s{s_oF}, s{s_w}, 4")
    p(f"s_add_u32 s{s_oE}, s{s_oE}, s{s_oF}")
    p(f"v_add_u32 v7, s{s_oE}, v4")
    p("v_lshlrev_b32 v7, 12, v7")
    p(f"v_lshl_add_u32 v{f_y}, v5, 4, v7")
    p("v_bfe_u32 v6, v1, 4, 1")
    p("v_lshlrev_b32 v6, 2, v6")
    p("v_xor_b32 v6, v5, v6")
    p("v_lshlrev_b32 v6, 4, v6")
    p("v_lshl_add_u32 v6, v4, 7, v6")
    p(f"s_add_u32 s{s_oE}, s{s_w4k}, {L_WD + 2048}")
    p(f"v_add_u32 v19, s{s_oE}, v6")
    p("v_lshrrev_b32 v6, 5, v1")
    p("v_lshlrev_b32 v6, 9, v6")
    p("v_and_b32 v7, 31, v1")
    p("v_lshl_add_u32 v24, v7, 2, v6")
    p("v_and_b32 v25, 15, v1")
    p("v_lshlrev_b32 v25, 2, v25")
    p(f"s_lshr_b32 s{s_oE}, s{s_rb}, 4")
    p(f"s_lshl_b32 s{s_oF}, s{s_cb}, 1")
    p(f"s_add_u32 s{s_oE}, s{s_oE}, s{s_oF}")
    p(f"s_lshl_b32 s{s_oE}, s{s_oE}, 8")
    p(f"s_lshl_b32 s{s_oF}, s{s_w}, 6")
    p(f"s_add_u32 s{s_oE}, s{s_oE}, s{s_oF}")
    p(f"s_add_u32 s{s_t3}, s{s_oE}, {WS_F2}")

def final_stats_loads(p):
    p(f"s_lshr_b32 s{s_oE}, s{s_rb}, 1")
    p(f"s_mul_i32 s{s_oE}, s{s_oE}, {14*1024}")
    p(f"s_and_b32 s{s_oF}, s{s_rb}, 1")
    p(f"s_lshl_b32 s{s_oF}, s{s_oF}, 8")
    p(f"s_add_u32 s{s_oE}, s{s_oE}, s{s_oF}")
    p(f"s_lshl_b32 s{s_oF}, s{s_wt}, 7")
    p(f"s_add_u32 s{s_oE}, s{s_oE}, s{s_oF}")
    p(f"s_add_u32 s{s_oE}, s{s_oE}, {WS_ST}")
    for fs in range(14):
        if fs % 4 == 0 and fs: p(f"s_add_u32 s{s_oE}, s{s_oE}, 4096")
        p(f"buffer_load_dword v{f_st+fs}, v24, s[{sWS}:{sWS+3}], s{s_oE} offen offset:{1024*(fs % 4)} sc1")

def final_stats_math(p):
    s = f_st
    for fs in range(1, 14):
        p(f"v_add_f32 v{s}, v{s}, v{s+fs}")
    p(f"v_mov_b32 v{s+1}, v{s}")
    p(f"s_mov_b32 s{s_oE}, 0x3b124925")
    p(f"v_permlane32_swap_b32 v{s}, v{s+1}")
    p(f"v_mul_f32 v{s}, s{s_oE}, v{s}")
    p(f"v_mul_f32 v{s+1}, s{s_oE}, v{s+1}")
    p(f"v_fma_f32 v{s+1}, -v{s}, v{s}, v{s+1}")
    p(f"v_max_f32 v{s+1}, 0, v{s+1}")
    p(f"v_cvt_pk_bf16_f32 v{s+2}, v{s}, v{s+1}")
    p(f"v_lshlrev_b32 v{s}, 16, v{s+2}")
    p(f"v_and_b32 v{s+1}, s{s_msk}, v{s+2}")
    p(f"v_add_f32 v{s+1}, 0x3727c5ac, v{s+1}")
    p(f"v_cvt_pk_bf16_f32 v{s+1}, v{s+1}, v{s+1}")
    p(f"v_lshlrev_b32 v{s+1}, 16, v{s+1}")
    p(f"v_sqrt_f32 v{s+1}, v{s+1}")
    p(f"v_cvt_pk_bf16_f32 v{s+1}, v{s+1}, v{s+1}")
    p(f"v_lshlrev_b32 v{s+1}, 16, v{s+1}")
    p(f"v_rcp_f32 v{s+1}, v{s+1}")
    p(f"v_mul_f32 v{s+2}, v{s+1}, v{s+1}")

def final_q_dma(p):
    p(f"s_add_u32 m0, s{s_w4k}, {L_WD}")
    p(f"buffer_load_dwordx4 v{f_q}, s[{sQ}:{sQ+3}], 0 offen lds", tok='qt')
    p(f"buffer_load_dwordx4 v{f_o}, s[{sQ}:{sQ+3}], 0 offen offset:1024 lds", tok='qt')

def final_y_loads(p):
    p(f"s_lshl_b32 s{s_oE}, s{s_rb}, 7")
    p(f"s_add_u32 s{s_oE}, s{s_oE}, {WS_YT}")
    p(f"s_add_u32 s{s_oF}, s{s_oE}, {8*4096}")
    p(f"buffer_load_dwordx4 v[{f_yv}:{f_yv+3}], v{f_y}, s[{sWS}:{sWS+3}], s{s_oE} offen sc1")
    p(f"buffer_load_dwordx4 v[{f_yv+4}:{f_yv+7}], v{f_y}, s[{sWS}:{sWS+3}], s{s_oF} offen sc1")

def final_y_lds(p):
    p(f"ds_write_b128 v19, v[{f_yv}:{f_yv+3}]", tok='fin')
    p(f"ds_write_b128 v19, v[{f_yv+4}:{f_yv+7}] offset:1024", tok='fin')

def final(p):
    p("s_nop 7")
    p("s_nop 3")
    for wv in range(4):
        Lb = f"L_red_{wv}"
        p(f"s_cmp_lg_u32 s{s_w}, {wv}")
        p(f"s_cbranch_scc1 {Lb}")
        for k in range(4):
            if k == wv: continue
            slot = (wv - k - 1) % 4
            base = L_RED + (k*3 + slot)*4096
            for g in range(4):
                r = 192 + 16*k + 4*g
                p.raw(f"ds_write_b128 v2, v[{r}:{r+3}] offset:{base + 1024*g}")
        for i in range(16):
            p.raw(f"v_mov_b32 v{56+i}, v{192+16*wv+i}")
        if wv < 3: p.raw("s_branch L_red_done")
        p(f"{Lb}:")
    p("L_red_done:")
    p("v_and_b32 v4, 31, v1")
    p("v_lshrrev_b32 v5, 5, v1")
    p(f"s_lshl_b32 s{s_t0}, s{s_wt}, 1")
    p("v_lshrrev_b32 v6, 4, v4")
    p(f"v_add_u32 v6, s{s_t0}, v6")
    p("v_lshlrev_b32 v6, 12, v6")
    p("v_and_b32 v7, 15, v4")
    p("v_lshl_add_u32 v6, v7, 7, v6")
    p("v_and_b32 v9, 7, v4")
    p(f"s_lshl_b32 s{s_t1}, s{s_wf}, 2")
    p(f"v_xor_b32 v9, s{s_t1}, v9")
    p("v_lshl_add_u32 v9, v9, 4, v6")
    p("v_lshl_add_u32 v9, v5, 3, v9")
    p(f"v_add_u32 v9, {L_WD}, v9")
    p("v_and_b32 v4, 3, v1")
    p("v_bfe_u32 v5, v1, 2, 2")
    p("v_bfe_u32 v6, v1, 4, 1")
    p("v_lshrrev_b32 v10, 5, v1")
    p("v_lshrrev_b32 v11, 1, v5")
    p(f"v_xor_b32 v11, s{s_wt}, v11")
    p("v_lshlrev_b32 v11, 6, v11")
    p("v_lshl_add_u32 v11, v6, 5, v11")
    p("v_lshl_add_u32 v11, v4, 3, v11")
    p("v_lshl_add_u32 v11, v5, 7, v11")
    p("v_lshl_add_u32 v11, v10, 9, v11")
    p(f"s_lshl_b32 s{s_t0}, s{s_wf}, 13")
    p(f"s_add_u32 s{s_t0}, s{s_t0}, {L_WD + 2048}")
    p(f"v_add_u32 v11, s{s_t0}, v11")
    p(f"s_mul_i32 s{s_t0}, s{s_w}, {3*4096}")
    p(f"v_add_u32 v12, s{s_t0}, v2")
    p("s_waitcnt lgkmcnt(0)")
    p.wait('qt', 'fin')
    p("s_barrier")
    for slot in range(3):
        for g in range(4):
            r = 192 + 16*slot + 4*g
            p(f"ds_read_b128 v[{r}:{r+3}], v12 offset:{L_RED + 4096*slot + 1024*g}")
    for g in range(4):
        p(f"v_xor_b32 v{72+g}, {16*g}, v9")
        p(f"ds_read_b64 v[{128+2*g}:{128+2*g+1}], v{72+g}")
        o = 4096*(g >> 1) + 1024*(g & 1)
        p(f"ds_read_b64_tr_b16 v[{136+2*g}:{136+2*g+1}], v11 offset:{o}")
    for slot in range(3):
        for i in range(16):
            p(f"v_add_f32 v{56+i}, v{56+i}, v{192+16*slot+i}")
    m_, r_, r2 = f_st, f_st + 1, f_st + 2
    for g in range(4):
        for r in range(4):
            xq = 128 + 2*g + (r >> 1); yq = 136 + 2*g + (r >> 1)
            x, y, t = 176 + r, 180 + r, 184 + r
            if r & 1:
                p(f"v_and_b32 v{x}, s{s_msk}, v{xq}"); p(f"v_and_b32 v{y}, s{s_msk}, v{yq}")
            else:
                p(f"v_lshlrev_b32 v{x}, 16, v{xq}"); p(f"v_lshlrev_b32 v{y}, 16, v{yq}")
        for r in range(4): p(f"v_sub_f32 v{184+r}, v{176+r}, v{m_}")
        for r in range(4): p(f"v_mul_f32 v{184+r}, v{184+r}, v{r_}")
        for r in range(4): p(f"v_fmac_f32 v{176+r}, v{184+r}, v{180+r}")
        for r in range(4): p(f"v_fmac_f32 v{176+r}, v{r2}, v{56+4*g+r}")
        p(f"v_cvt_pk_bf16_f32 v{152+2*g}, v176, v177")
        p(f"v_cvt_pk_bf16_f32 v{152+2*g+1}, v178, v179")
        p(f"ds_write_b64 v{72+g}, v[{152+2*g}:{152+2*g+1}] offset:16384", tok='ot')
    p.wait('ot')
    p("s_barrier")
    p(f"s_add_u32 s{s_t0}, s{s_w4k}, {L_WD + 16384}")
    p(f"v_add_u32 v4, s{s_t0}, v2")
    p("ds_read_b128 v[160:163], v4")
    p("ds_read_b128 v[164:167], v4 offset:1024")
    p(f"v_add_u32 v{f_o}, 1024, v{f_o}")
    p(f"buffer_store_dwordx4 v[160:163], v{f_q}, s[{sOUT}:{sOUT+3}], 0 offen")
    p(f"buffer_store_dwordx4 v[164:167], v{f_o}, s[{sOUT}:{sOUT+3}], 0 offen")

slots = lambda m: 5 if '32x32' in m.op else 1

def build():
    global slow_paths
    slow_paths = []
    p = Prog()
    prologue(p)
    stamp(p, 1)
    main, step_nm, bar_nm = gemm1_main({0: ['p0in'], 5: ['kt'], 7: ['sel0']})
    qd = []
    qd += L(dma_x, 2, 2) + L(dma_w, 0, 2, WSLOT(2)) + L(dma_x, 3, 3) + L(dma_w, 0, 3, WSLOT(3))
    for C in range(3):
        qd += tag_after(L(dma_x, C + 4, C) + L(dma_w, 0, C + 4, WSLOT(C)), bar_nm[C])
    for C, k in ((3, 0), (4, 2), (5, 4)):
        qd += tag_after(L(dma_w, 1, k, P2SLOT[k]) + L(dma_w, 1, k + 1, P2SLOT[k+1]), bar_nm[C])
    qd += tag_after(L(dma_w, 1, 6, P2SLOT[6]), bar_nm[6])
    qd += tag_after(L(dma_wd, 0, 5) + L(dma_wd, 0, 4) + L(dma_wd, 0, 0), bar_nm[8])
    qd += tag_after(L(dma_wd, 0, 1), bar_nm[9])
    qd += tag_after(L(dma_wd, 0, 2), bar_nm[11])
    qv = []
    qv += L(phase0_addr)
    qv += tag_after(L(phase0_reads), bar_nm[0])
    qv += L(phase0_compute)
    qv += L(g1_stats)
    q2 = Prog(); q2("v_mov_b32 v13, 0"); q2(f"buffer_load_dword v{vNON}, v13, s[{sDBG}:{sDBG+3}], 0 offen sc1")
    qv += q2.ins
    qv += tag_after(L(phase0_store), bar_nm[5])
    qv += tag_after(L(select_out, 0), step_nm[28] + 2)
    qv += L(h_bases)
    qv += L(gemm2_setup)
    qv += L(kv_flag)
    qv += L(conv_poll_addr)
    qv += tag_after(L(epi_reads, 0), bar_nm[7])
    em = L(epi_math, 0, 0)
    qv += em[:70] + L(poll_issue, vP0, 95, s_t4) + em[70:]
    qv += L(poll_check, vP0, 95, s_t4, "kv")
    qv += L(conv_loads_kv)
    qv += L(conv_loads_ssm)
    qv += L(conv_addr)
    if OPT.get('exp'):
        e = OPT['exp']
        if e & 1:
            qv = []; slow_paths.clear()
            qd = [i for i in qd if f's[{sWD}:{sWD+3}]' not in i.text]
        if e & 2: qd_left, qd = qd, []
        if e & 4: main = [i for i in main if not (i.kind == 'mfma' and '16x16' in i.op)]
        if e & 8: main = [i for i in main if i.kind not in ('barrier',)]
        if e & 16: main = [i for i in main if i.kind != 'ds']
        if e & 2:
            for i in main:
                if i.kind == 'pwait': i.need = [t for t in i.need if t[0] == 's' and t[1:].isdigit()] ;
        for i in main:
            if i.kind == 'pwait' and (e & 1): i.need = [t for t in i.need if t not in ('kt', 'sel0')]
            if (e & 16):
                if i.need: i.need = [t for t in i.need if not (t[0] == 's' and t[1:].isdigit())]
        woven, left = weave(main, [qd, qv], slots, "gemm1")
        p(";@nopad"); p.add(woven); p(";@pad")
        stamp(p, 2)
        p("s_waitcnt vmcnt(0) lgkmcnt(0)")
        stamps_out(p)
        p("L_end:"); p("s_endpgm"); p.add(slow_paths); p("L_code_end:")
        return p
    woven, left = weave(main, [qd, qv], slots, "gemm1")
    full = woven + left[0] + left[1]
    idx = lambda f: [k for k, i in enumerate(full) if f(i.text)]
    assert max(idx(lambda t: f"v{p0_st}," in t and 'store' in t)) < min(idx(lambda t: t.startswith("v_mfma") and "v[192:207]" in t)), "phase-0 store too late"
    assert max(idx(lambda t: t.startswith(f"v_add_u32 v{vWDD+7},"))) < min(idx(lambda t: f"s[{sWD}:{sWD+3}]" in t)), "gemm2 setup too late"
    assert max(idx(lambda t: "v_accvgpr_read" in t)) < 10**9
    p(";@nopad"); p.add(woven); p(";@pad")
    p.add(left[0]); p.add(left[1])
    stamp(p, 2)
    p("s_nop 3")
    select_out(p, 1)
    p.wait('sel1')
    p("s_barrier")
    dma_wd(p, 0, 3)
    epi_reads(p, 1)
    conv_build(p)
    p(f"v_mov_b32 v{cv_D2}, v{cv_D}") if False else None
    for a in (5, 4, 0): wd_to_regs(p, a)
    epi_math(p, 1, 1)
    p(f"v_mov_b32 v95, v{cv_D}")
    h_flag(p, 0)
    p.wait('cv')
    p("s_barrier")
    stamp(p, 3)
    cm = conv_main()
    qa = []
    qa += L(dma_wd, 0, 6)
    qa += L(wd_to_regs, 1) + L(wd_to_regs, 2)
    q2 = Prog()
    for a in (5, 4, 0):
        q2.wait(f"wr{a}"); dma_wd(q2, 1, a)
    qa += q2.ins
    q2 = Prog(); h_poll_addr(q2, 0, s_t4); q2("v_min_u32 v94, 13, v1"); q2("v_lshlrev_b32 v94, 2, v94"); poll_issue(q2, vP1, 94, s_t4)
    qa += q2.ins
    qa += tag_after(L(h_flag, 1), 60)
    qa += L(wd_to_regs, 3) + L(wd_to_regs, 6)
    woven, left = weave(cm, [qa], slots, "conv")
    p(";@nopad"); p.add(woven); p(";@pad")
    p.add(left[0])
    stamp(p, 4)
    poll_check(p, vP1, 94, s_t4, "h0")
    for a in range(7):
        for j in range(2): h_loads(p, 0, a, j)
    for a in (1, 2, 3, 6):
        p.wait(f"wr{a}"); dma_wd(p, 1, a)
    h_poll_addr(p, 1, s_t4)
    poll_issue(p, vP2, 94, s_t4)
    p(f"v_mov_b32 v{cv_D2}, v95")
    conv_reduce(p)
    stamp(p, 5)
    gate = L(poll_check, vP2, 94, s_t4, "h1")
    gm, step2 = gemm2_main((1, gate))
    qf = []
    qf += L(y_flag)
    qf += L(final_addr)
    qf += L(final_stats_loads)
    qf += tag_after(L(poll_issue, vP3, 25, s_t3), step2[16])
    q2 = Prog(); q2.wait('wq0'); final_q_dma(q2)
    qf += tag_after(q2.ins, step2[17])
    qf += L(final_stats_math)
    qf += tag_after(L(poll_check, vP3, 25, s_t3, "y"), step2[21])
    qf += L(final_y_loads)
    qf += tag_after(L(final_y_lds), step2[26])
    woven, left = weave(gm, [qf], slots, "gemm2")
    p(";@nopad"); p.add(woven); p(";@pad")
    p.add(left[0])
    stamp(p, 6)
    final(p)
    stamp(p, 7)
    p("s_waitcnt vmcnt(0)")
    stamp(p, 8)
    stamps_out(p)
    p("L_end:")
    p("s_endpgm")
    p.add(slow_paths)
    p("L_code_end:")
    return p

HEADER_COMMENT = open("parallel_sum__ssm_conv_h3__glu_gated_reglu__prompt.s.ref").read().split("; Override launch")[0]

def emit(p, path):
    hdr = f'.amdgcn_target "amdgcn-amd-amdhsa--gfx950"\n.text\n.globl {KNAME}\n.p2align 8\n.type {KNAME},@function\n{KNAME}:\n'
    ins = finalize(p, hdr, "tmp_sz", pad=OPT['pad'])
    body = '\n'.join(('    ' + i.text) if is_code(i) else i.text for i in ins if i.kind != 'pwait')
    txt = HEADER_COMMENT
    txt += f"; @launch grid=({NWG},1,1) block=(256,1,1) lds={LDS_BYTES}\n"
    txt += hdr + body + "\n"
    txt += f""".section .rodata,"a"
.p2align 6
.amdhsa_kernel {KNAME}
  .amdhsa_next_free_vgpr 512
  .amdhsa_next_free_sgpr 102
  .amdhsa_accum_offset 256
  .amdhsa_group_segment_fixed_size 0
  .amdhsa_kernarg_size 104
  .amdhsa_user_sgpr_count 2
  .amdhsa_user_sgpr_kernarg_segment_ptr 1
  .amdhsa_system_sgpr_workgroup_id_x 1
.end_amdhsa_kernel
"""
    open(path, "w").write(txt)

if __name__ == "__main__":
    out = sys.argv[1]
    for a in sys.argv[2:]:
        k, v = a.split('=') if '=' in a else (a, '1')
        OPT[k] = int(v)
    emit(build(), out)
```

```python
class Asm:
    def __init__(self):
        self.lines = []
        self.nlabel = 0
    def __call__(self, s=""):
        for l in s.split("\n"):
            self.lines.append(l)
    def label(self, base="L"):
        self.nlabel += 1
        return f"{base}_{self.nlabel}"
    def text(self):
        return "\n".join(self.lines) + "\n"

def kernel_begin(a, name):
    a(f".globl {name}")
    a(".p2align 8")
    a(f".type {name},@function")
    a(f"{name}:")

def kernel_desc(name, vgpr, sgpr, accum):
    return f""".p2align 6
.amdhsa_kernel {name}
  .amdhsa_next_free_vgpr {vgpr}
  .amdhsa_next_free_sgpr {sgpr}
  .amdhsa_accum_offset {accum}
  .amdhsa_group_segment_fixed_size 0
  .amdhsa_kernarg_size 104
  .amdhsa_user_sgpr_count 2
  .amdhsa_user_sgpr_kernarg_segment_ptr 1
  .amdhsa_system_sgpr_workgroup_id_x 1
.end_amdhsa_kernel
"""

def srd(a, r, lo, hi, nbytes):
    a(f"s_mov_b32 s{r}, s{lo}")
    a(f"s_and_b32 s{r+1}, s{hi}, 0xffff")
    a(f"s_mov_b32 s{r+2}, {nbytes}")
    a(f"s_mov_b32 s{r+3}, 0x20000")
```

```python
import sys
from asmlib import *
out = sys.argv[1]; kind = sys.argv[2]; every = int(sys.argv[3]); nval = int(sys.argv[4]); nds = int(sys.argv[5]) if len(sys.argv) > 5 else 0; wev = int(sys.argv[6]) if len(sys.argv) > 6 else 0; wk = sys.argv[7] if len(sys.argv) > 7 else 'b32'
a = Asm()
a("; @launch grid=(224,1,1) block=(256,1,1) lds=131072")
a('.amdgcn_target "amdgcn-amd-amdhsa--gfx950"')
a(".text")
name = "mb_kernel"
kernel_begin(a, name)
a("s_cmp_ge_u32 s2, 224")
a("s_cbranch_scc1 L_done")
a("s_load_dwordx2 s[10:11], s[0:1], 96")
a("s_load_dwordx2 s[4:5], s[0:1], 56")
a("v_and_b32 v200, 63, v0"); a("v_mov_b32 v203, v0")
a("v_lshlrev_b32 v201, 4, v200")
a("v_lshlrev_b32 v204, 4, v0"); a("v_lshlrev_b32 v205, 2, v200"); a("v_add_u32 v205, 0x1c000, v205"); a("v_add_u32 v206, 0x1c000, v201")
a("s_waitcnt lgkmcnt(0)")
srd(a, 12, 4, 5, 448*1792*2)
a("v_lshrrev_b32 v1, 6, v0"); a("s_nop 0"); a("v_readfirstlane_b32 s32, v1"); a("s_lshl_b32 s36, s32, 10")
a("s_and_b32 s30, s2, 7"); a("s_lshl_b32 s30, s30, 17")
for i in range(128):
    a(f"v_mov_b32 v{i}, 0x3c003c00")
for i in range(128):
    a(f"v_accvgpr_write_b32 a{i}, 0")
a("s_barrier")
a("s_memrealtime s[40:41]")
a("s_memtime s[48:49]")
a("s_mov_b32 s20, 32")
a("s_mov_b32 s37, s30")
a(".p2align 4")
a("L_loop:"); a("s_mov_b32 s37, s30"); a("s_nop 0")
fi = 0; nd = 0
for m in range(32):
    t = m % 8
    a(f"v_mfma_f32_32x32x16_bf16 a[{16*t}:{16*t+15}], v[{4*(m%4)}:{4*(m%4)+3}], v[{16+4*(m%2)}:{16+4*(m%2)+3}], a[{16*t}:{16*t+15}]")
    if every and m % every == 0:
        if kind == "dma":
            a(f"s_add_u32 m0, s36, {(nd%16)*4096}")
            a(f"s_add_u32 s37, s37, 4096")
            a(f"buffer_load_dwordx4 v204, s[12:15], s37 offen lds")
        elif kind == "dma1":
            a(f"buffer_load_dwordx4 v204, s[12:15], s37 offen offset:{(nd%4)*1024} lds")
        elif kind == "ld":
            r = 64 + 4*(nd % 8)
            a(f"s_add_u32 s37, s37, 4096")
            a(f"buffer_load_dwordx4 v[{r}:{r+3}], v204, s[12:15], s37 offen")
        nd += 1
        if nd % 4 == 0: a("s_waitcnt vmcnt(8)")
    for f in range(nds):
        r4 = 100 + 4*(fi % 6)
        a(f"ds_read_b128 v[{r4}:{r4+3}], v201 offset:{(fi%16)*1024}"); fi += 1
    if wev and m % wev == 1:
        if wk == 'b32': a(f"ds_write_b32 v205, v30 offset:{(m%8)*256}")
        elif wk == 'b128': a(f"ds_write_b128 v206, v[32:35] offset:{(m%8)*1024}")
    if nds and m % 2 == 1: a("s_waitcnt lgkmcnt(3)")
    for f in range(nval):
        r = 40 + (fi % 16); fi += 1
        a(f"v_fma_f32 v{r}, v30, v31, v{r}")
a("s_and_b32 s37, s37, 0x1ffff"); a("s_add_u32 s37, s37, s30") if False else None
a("s_sub_u32 s20, s20, 1")
a("s_cmp_lg_u32 s20, 0")
a("s_cbranch_scc1 L_loop")
a("s_memrealtime s[44:45]")
a("s_memtime s[50:51]")
a("s_waitcnt lgkmcnt(0) vmcnt(0)")
a("v_cmp_eq_u32 vcc, 0, v203")
a("s_and_saveexec_b64 s[38:39], vcc")
a("s_cbranch_execz L_done")
a("s_lshl_b32 s3, s2, 5")
a("v_mov_b32 v1, s3")
a("s_sub_u32 s50, s50, s48")
for i, r in enumerate((40, 40, 44)):
    a(f"v_mov_b32 v2, s{r}")
    a(f"v_mov_b32 v3, s{r+1}")
    a(f"global_store_dwordx2 v1, v[2:3], s[10:11] offset:{8*i}")
a("v_mov_b32 v2, s50")
a("v_mov_b32 v3, 0")
a("global_store_dwordx2 v1, v[2:3], s[10:11] offset:24")
a("L_done:")
a("s_endpgm")
a('.section .rodata,"a"')
a(kernel_desc(name, 384, 64, 256))
open(out, "w").write(a.text())
```
